```python
import torch

def _softmax(x, axis=-1):
    return torch.softmax(x, dim=axis)
def _gelu(x):
    return torch.nn.functional.gelu(x, approximate="tanh")
def _silu(x):
    return torch.nn.functional.silu(x)
def _sigmoid(x):
    return torch.sigmoid(x)
def _layernorm(x, axis=-1, eps=1e-5):
    m = x.mean(dim=axis, keepdim=True)
    v = x.var(dim=axis, keepdim=True, unbiased=False)
    return (x - m) / torch.sqrt(v + eps)
def _scatter_add(tgt, idx, src, axis=0):
    return tgt.clone().index_add_(axis, idx, src)
def _segment_sum(src, seg, n):
    out = torch.zeros((n,) + src.shape[1:], dtype=src.dtype)
    return out.index_add_(0, seg, src)
def _pad(x, pw):
    flat = tuple(v for pair in reversed(pw) for v in pair)
    return torch.nn.functional.pad(x, flat)

kernel_name = 'concat_heads__gqa_block_cached__mha_block_cached__near_ridge'

def setup_inputs():

    _w = (lambda a: (lambda t: t.to(torch.bfloat16) if t.is_floating_point() else t)(torch.as_tensor(a)))
    def _A_setup():
        B, Sq, D = 8, 80, 512
        Hq, Hkv, Sk, Dh = 32, 8, 1024, 128
        assert Hq % Hkv == 0, (Hq, Hkv)
        return {
            "x": _w((lambda *s: torch.randn(*s, dtype=torch.bfloat16) * 0.8)(B, Sq, D)),
            "k_cache": _w((lambda *s: torch.randn(*s, dtype=torch.bfloat16) * 0.8)(B, Hkv, Sk, Dh)),
            "v_cache": _w((lambda *s: torch.randn(*s, dtype=torch.bfloat16) * 0.05)(B, Hkv, Sk, Dh)),
            "wq": _w((lambda *s: torch.randn(*s, dtype=torch.bfloat16) * 0.8)(D, Hq * Dh) * (D ** -0.5)),
            "wo": _w((lambda *s: torch.randn(*s, dtype=torch.bfloat16) * 0.05)(Hq * Dh, D) * ((Hq * Dh) ** -0.5)),
        }
    _A_in = _A_setup()

    def _B_setup():
        B, Sq, D = 8, 80, 512
        H, Sk, Dh = 32, 1024, 128
        return {
            "x": _w((lambda *s: torch.randn(*s, dtype=torch.bfloat16) * 0.8)(B, Sq, D)),
            "k_cache": _w((lambda *s: torch.randn(*s, dtype=torch.bfloat16) * 0.8)(B, H, Sk, Dh)),
            "v_cache": _w((lambda *s: torch.randn(*s, dtype=torch.bfloat16) * 0.05)(B, H, Sk, Dh)),
            "wq": _w((lambda *s: torch.randn(*s, dtype=torch.bfloat16) * 0.8)(D, H * Dh) * (D ** -0.5)),
            "wo": _w((lambda *s: torch.randn(*s, dtype=torch.bfloat16) * 0.05)(H * Dh, D) * ((H * Dh) ** -0.5)),
        }
    _B_in = _B_setup()

    return {
        "A_x": _A_in["x"],
        "A_k_cache": _A_in["k_cache"],
        "A_v_cache": _A_in["v_cache"],
        "A_wq": _A_in["wq"],
        "A_wo": _A_in["wo"],
        "B_x": _B_in["x"],
        "B_k_cache": _B_in["k_cache"],
        "B_v_cache": _B_in["v_cache"],
        "B_wq": _B_in["wq"],
        "B_wo": _B_in["wo"],
    }

def reference(A_x, A_k_cache, A_v_cache, A_wq, A_wo, B_x, B_k_cache, B_v_cache, B_wq, B_wo):
    def _A_ref(x, k_cache, v_cache, wq, wo):
        B, Sq, D = x.shape
        Hq, Dh = 32, 128
        Hkv = k_cache.shape[1]
        rep = Hq // Hkv
        q = (lambda x, *d: x.permute(*d))((x @ wq).reshape(B, Sq, Hq, Dh), 0, 2, 1, 3)
        k = (lambda x, n, axis: torch.repeat_interleave(x, n, dim=axis))(k_cache, rep, axis=1)
        v = (lambda x, n, axis: torch.repeat_interleave(x, n, dim=axis))(v_cache, rep, axis=1)
        scores = torch.einsum("bhqd,bhkd->bhqk", q, k) * (Dh ** -0.5)
        p = _softmax(scores, axis=-1)
        o = torch.einsum("bhqk,bhkd->bhqd", p, v)
        return (lambda x, *d: x.permute(*d))(o, 0, 2, 1, 3).reshape(B, Sq, Hq * Dh) @ wo

    def _B_ref(x, k_cache, v_cache, wq, wo):
        B, Sq, D = x.shape
        H, Dh = 32, 128
        q = (lambda x, *d: x.permute(*d))((x @ wq).reshape(B, Sq, H, Dh), 0, 2, 1, 3)
        scores = torch.einsum("bhqd,bhkd->bhqk", q, k_cache) * (Dh ** -0.5)
        p = _softmax(scores, axis=-1)
        o = torch.einsum("bhqk,bhkd->bhqd", p, v_cache)
        return (lambda x, *d: x.permute(*d))(o, 0, 2, 1, 3).reshape(B, Sq, H * Dh) @ wo

    a = _A_ref(A_x, A_k_cache, A_v_cache, A_wq, A_wo)
    b = _B_ref(B_x, B_k_cache, B_v_cache, B_wq, B_wo)
    return torch.concatenate([a, b], axis=-1)
```

```python
import re


class Asm:
    def __init__(self):
        self.L = []

    def e(self, t):
        self.L.append("  " + t)

    def lab(self, t):
        self.L.append(t + ":")

    def c(self, t):
        self.L.append("  ; " + t)

    def raw(self, t):
        self.L.append(t)

    def text(self):
        return "\n".join(self.L) + "\n"


_REG = re.compile(r"\b([vas])(\d+)\b|\b([vas])\[(\d+):(\d+)\]|\b(vcc|exec|m0|scc)\b")


def regs_of(op):
    out = []
    for m in _REG.finditer(op):
        if m.group(1):
            out.append(m.group(1) + m.group(2))
        elif m.group(3):
            for i in range(int(m.group(4)), int(m.group(5)) + 1):
                out.append(m.group(3) + str(i))
        else:
            out.append(m.group(6))
    return out


TRANS = ("v_exp_f32", "v_log_f32", "v_rcp_f32", "v_rsq_f32", "v_sqrt_f32", "v_sin_f32", "v_cos_f32")


class Ins:
    __slots__ = ("text", "op", "kind", "w", "r", "srcab", "srcc", "ws", "line")


def parse(line, n):
    t = line.split(";")[0].strip()
    if not t or t.endswith(":") or t.startswith("."):
        return None
    parts = t.split(None, 1)
    op = parts[0]
    rest = parts[1] if len(parts) > 1 else ""
    ops = [o.strip() for o in rest.split(",")] if rest else []
    i = Ins()
    i.text = t
    i.op = op
    i.line = n
    i.w = set()
    i.r = set()
    i.srcab = set()
    i.srcc = set()
    i.ws = 1
    if op == "s_nop":
        i.kind = "nop"
        i.ws = int(ops[0], 0) + 1
    elif op.startswith("v_mfma"):
        i.kind = "mfma"
        i.w = set(regs_of(ops[0]))
        i.srcab = set(regs_of(ops[1])) | set(regs_of(ops[2]))
        i.srcc = set(regs_of(ops[3]))
        i.r = i.srcab | i.srcc
    elif op.startswith("v_cmp"):
        i.kind = "valu"
        i.w = set(regs_of(ops[0]))
        for o in ops[1:]:
            i.r |= set(regs_of(o))
    elif op.startswith("v_permlane"):
        i.kind = "valu"
        i.w = set(regs_of(ops[0])) | set(regs_of(ops[1]))
        i.r = set(i.w)
    elif op.startswith("v_"):
        i.kind = "valu"
        i.w = set(regs_of(ops[0]))
        for o in ops[1:]:
            i.r |= set(regs_of(o))
        if op.startswith("v_fmac") or op.startswith("v_dot2c"):
            i.r |= i.w
        if op.startswith("v_cndmask") and len(ops) == 3:
            i.r.add("vcc")
    elif op.startswith("ds_read") or op.startswith("ds_bpermute"):
        i.kind = "ds"
        i.w = set(regs_of(ops[0]))
        for o in ops[1:]:
            i.r |= set(regs_of(o.split()[0]))
    elif op.startswith("ds_"):
        i.kind = "ds"
        for o in ops:
            i.r |= set(regs_of(o.split()[0]))
    elif op.startswith("buffer_load") or op.startswith("global_load"):
        i.kind = "vmem"
        if re.search(r"\blds\b", t):
            for o in ops:
                i.r |= set(regs_of(o.split()[0]))
            i.r.add("m0")
            i.kind = "dma"
        else:
            i.w = set(regs_of(ops[0]))
            for o in ops[1:]:
                i.r |= set(regs_of(o.split()[0]))
    elif op.startswith("buffer_") or op.startswith("global_"):
        i.kind = "vmem"
        for o in ops:
            i.r |= set(regs_of(o.split()[0]))
        if "x4" in op or "x3" in op:
            i.kind = "vstore_wide"
    elif op.startswith("s_"):
        i.kind = "salu"
        if op.startswith("s_cmp") or op.startswith("s_cbranch") or op.startswith("s_branch") or op.startswith("s_waitcnt") or op in ("s_barrier", "s_endpgm", "s_sleep", "s_setprio"):
            for o in ops:
                i.r |= set(regs_of(o))
            if "vcc" in op:
                i.r.add("vcc")
        else:
            if ops:
                i.w = set(regs_of(ops[0]))
            for o in ops[1:]:
                i.r |= set(regs_of(o))
    else:
        i.kind = "other"
    return i


def check(text, verbose=True):
    ins = []
    for n, line in enumerate(text.splitlines(), 1):
        i = parse(line, n)
        if i is not None:
            ins.append(i)
    probs = []
    N = len(ins)
    for k in range(N):
        p = ins[k]
        dist = 0
        for m in range(k + 1, min(N, k + 24)):
            c = ins[m]
            need = 0
            why = ""
            if p.kind == "valu" and c.kind == "mfma" and (p.w & c.r):
                need, why = 2, "valu->mfma src"
            if p.kind == "mfma":
                if c.kind == "mfma":
                    if p.w & c.srcab:
                        need, why = 8, "mfma D->mfma A/B"
                    elif (p.w & c.srcc) and p.w != c.srcc:
                        need, why = 6, "mfma D->mfma C overlap"
                elif c.kind in ("valu", "ds", "vmem", "vstore_wide", "dma") and ((p.w & c.r) or (p.w & c.w)):
                    need, why = 8, "mfma D->valu/mem"
                if c.kind == "valu" and (p.srcc & c.w):
                    if need < 3:
                        need, why = 3, "mfma C WAR"
            if p.kind == "valu" and p.op.startswith(TRANS) and c.kind == "valu" and not c.op.startswith(TRANS) and (p.w & c.r):
                need, why = max(need, 1), "trans->valu"
            if p.kind == "valu" and p.op.startswith(TRANS) and c.kind in ("ds", "vmem", "vstore_wide") and (p.w & c.r):
                need, why = max(need, 1), "trans->mem"
            if p.kind == "valu" and c.op.startswith(("v_readfirstlane", "v_readlane")) and (p.w & c.r):
                need, why = max(need, 1), "valu->readlane"
            if p.kind == "valu" and c.op.startswith("v_permlane") and (p.w & c.r):
                need, why = max(need, 2), "valu->permlane"
            if p.kind == "valu":
                sw = {x for x in p.w if x[0] == "s" or x == "vcc"}
                if sw and c.kind == "valu" and (sw & c.r):
                    need, why = max(need, 2), "valu sgpr->valu"
                if sw and c.kind in ("vmem", "vstore_wide", "dma") and (sw & c.r):
                    need, why = max(need, 5), "valu sgpr->vmem"
            if p.kind == "salu" and "m0" in p.w and c.kind == "dma":
                need, why = max(need, 1), "m0->dma"
            if p.kind == "vstore_wide" and c.kind == "valu" and (p.r & c.w):
                need, why = max(need, 2), "store data WAR"
            if p.kind == "valu" and "exec" in p.w and c.kind == "mfma":
                need, why = max(need, 4), "exec->mfma"
            if need > dist:
                probs.append(f"line {p.line}: '{p.text}' -> line {c.line}: '{c.text}': {why} need {need} have {dist}")
            dist += c.ws
            if dist >= 20:
                break
    if verbose:
        for q in probs[:40]:
            print("HAZARD", q)
        print(f"hazard check: {len(probs)} problems, {N} instructions")
    return probs
```

```python
import sys, struct, math
from asmlib import Asm, check

NAME = "concat_heads__gqa_block_cached__mha_block_cached__near_ridge"
HDR = open("cdna_kernels/" + NAME + ".s.ref").read().split("; Override launch")[0]


def f2u(x):
    return struct.unpack("<I", struct.pack("<f", x))[0]


SCALE_C = math.log2(math.e) / math.sqrt(128.0)
THR_T = 8.0
WS_BYTES = 268435456
PART_HEAD = 81920

S_X, S_WQ, S_K, S_V, S_WO, S_WS, S_OUT, S_DBG = 32, 36, 40, 44, 48, 52, 56, 60
S_W, S_PW, S_ISA, S_B, S_H, S_RING, S_MISC, S_C, S_CNT, S_KOFF = 64, 65, 66, 67, 68, 69, 70, 71, 72, 73
S_T0, S_T1, S_T2, S_T3 = 74, 75, 76, 77
S_PRING, S_PMISC, S_THR = 78, 79, 80
S_STAMP = 84

V_LANE = 0
V_OFFK = 1
V_OFFV = 5
V_KRD = 7
V_VRD = 11
V_M = 19
V_MC = 24
V_THR = 29
V_L16 = 34
V_FLAG = 35
V_ONES = 36
V_Q = 40
V_S = 120
V_P = 136
V_VF = 144
V_T = 208
A_O = 0
A_L = 160
A_KF = 180

RING = 32768
SLOT = 8192
MISC0 = 131072
FLAGS = 163840 - 64


def srd(n):
    return f"s[{n}:{n+3}]"


def vr(b, n=4):
    return f"v[{b}:{b+n-1}]"


def ar(b, n=4):
    return f"a[{b}:{b+n-1}]"


def gen(nt_kv="nt", nt_w="", stamps=False, dump=None):
    g = Asm()
    e = g.e
    g.raw(HDR.rstrip("\n"))
    g.raw("; @launch kernel=attn_kernel grid=(256,1,1) block=(256,1,1) lds=163840")
    g.raw("; @launch kernel=reduce_kernel grid=(512,1,1) block=(256,1,1) lds=40960")
    g.raw('.amdgcn_target "amdgcn-amd-amdhsa--gfx950"')
    g.raw(".text")
    g.raw(".globl attn_kernel")
    g.raw(".p2align 8")
    g.raw(".type attn_kernel,@function")
    g.lab("attn_kernel")
    nst = [0]

    def stamp():
        if stamps:
            e(f"s_memrealtime s[{S_STAMP+2*nst[0]}:{S_STAMP+2*nst[0]+1}]")
            nst[0] += 1

    e("s_cmp_ge_u32 s2, 256")
    e("s_cbranch_scc1 L_end1")
    stamp()
    e("s_load_dwordx16 s[4:19], s[0:1], 0")
    e("s_load_dwordx8 s[20:27], s[0:1], 64")
    e("s_load_dwordx2 s[28:29], s[0:1], 96")
    e("v_lshrrev_b32 v1, 6, v0")
    e("v_and_b32 v0, 63, v0")
    e(f"v_readfirstlane_b32 s{S_W}, v1")
    e(f"s_and_b32 s{S_T0}, s2, 7")
    e(f"s_lshr_b32 s{S_T1}, s2, 3")
    e(f"s_lshr_b32 s{S_B}, s{S_T1}, 2")
    e(f"s_and_b32 s{S_T1}, s{S_T1}, 3")
    e(f"s_lshl_b32 s{S_H}, s{S_T0}, 2")
    e(f"s_add_u32 s{S_H}, s{S_H}, s{S_T1}")
    e(f"s_and_b32 s{S_PW}, s{S_W}, 1")
    e(f"s_lshr_b32 s{S_ISA}, s{S_W}, 1")
    e(f"s_lshl_b32 s{S_RING}, s{S_W}, 15")
    e(f"s_xor_b32 s{S_PRING}, s{S_RING}, {RING}")
    e(f"s_lshl_b32 s{S_MISC}, s{S_W}, 13")
    e(f"s_add_u32 s{S_MISC}, s{S_MISC}, {MISC0}")
    e(f"s_xor_b32 s{S_PMISC}, s{S_MISC}, 8192")
    e(f"s_mov_b32 s{S_C}, {f2u(SCALE_C):#x}")
    e(f"s_mov_b32 s{S_THR}, {f2u(THR_T / SCALE_C):#x}")
    e(f"s_lshl_b32 s{S_T1}, s{S_B}, 5")
    e(f"s_add_u32 s{S_T1}, s{S_T1}, s{S_H}")
    e(f"s_lshl_b32 s{S_T2}, s{S_B}, 3")
    e(f"s_add_u32 s{S_T2}, s{S_T2}, s{S_T0}")
    e(f"s_cmp_eq_u32 s{S_ISA}, 1")
    e(f"s_cselect_b32 s{S_T1}, s{S_T2}, s{S_T1}")
    e(f"s_lshl_b32 s{S_T1}, s{S_T1}, 18")
    e(f"s_lshl_b32 s{S_T2}, s{S_PW}, 17")
    e(f"s_add_u32 s{S_T1}, s{S_T1}, s{S_T2}")
    e(f"s_mul_i32 s{S_T2}, s{S_B}, 81920")
    T = V_T
    e(f"v_lshrrev_b32 v{T}, 4, v0")
    e(f"v_and_b32 v{T+1}, 15, v0")
    e(f"v_lshlrev_b32 v{V_L16}, 4, v0")
    for i in range(4):
        e(f"v_add_u32 v{T+2}, {4*i}, v{T}")
        e(f"v_xor_b32 v{T+2}, v{T+2}, v{T+1}")
        e(f"v_lshlrev_b32 v{T+2}, 4, v{T+2}")
        e(f"v_lshl_add_u32 v{V_OFFK+i}, v{T}, 8, v{T+2}")
    for i in range(2):
        e(f"v_add_u32 v{T+2}, {4*i}, v{T}")
        e(f"v_lshlrev_b32 v{T+2}, 1, v{T+2}")
        e(f"v_xor_b32 v{T+2}, v{T+2}, v{T+1}")
        e(f"v_lshlrev_b32 v{T+2}, 4, v{T+2}")
        e(f"v_lshl_add_u32 v{V_OFFV+i}, v{T}, 8, v{T+2}")
    e(f"v_xor_b32 v{T+2}, v{T}, v{T+1}")
    e(f"s_lshl_b32 s{S_T3}, s{S_PW}, 3")
    e(f"v_xor_b32 v{T+2}, s{S_T3}, v{T+2}")
    e(f"v_lshlrev_b32 v{T+3}, 8, v{T+1}")
    e(f"v_add_u32 v{T+3}, s{S_RING}, v{T+3}")
    for s in range(4):
        e(f"v_xor_b32 v{T+4}, {4*s}, v{T+2}")
        e(f"v_lshl_add_u32 v{V_KRD+s}, v{T+4}, 4, v{T+3}")
    e(f"v_lshrrev_b32 v{T+2}, 2, v0")
    e(f"v_lshlrev_b32 v{T+3}, 8, v{T+2}")
    e(f"v_add_u32 v{T+3}, s{S_RING}, v{T+3}")
    e(f"v_bfe_u32 v{T+4}, v0, 1, 1")
    e(f"v_lshl_add_u32 v{T+3}, v{T+4}, 4, v{T+3}")
    e(f"v_and_b32 v{T+4}, 1, v0")
    e(f"v_lshl_add_u32 v{T+3}, v{T+4}, 3, v{T+3}")
    e(f"v_and_b32 v{T+2}, 7, v{T+2}")
    e(f"v_lshlrev_b32 v{T+2}, 1, v{T+2}")
    e(f"v_mov_b32 v{T+10}, v{T+2}")
    e(f"v_mov_b32 v{T+11}, v{T+3}")
    e(f"v_xor_b32 v{T+2}, s{S_T3}, v{T+2}")
    for t in range(8):
        e(f"v_xor_b32 v{T+4}, {2*t}, v{T+2}")
        e(f"v_lshl_add_u32 v{V_VRD+t}, v{T+4}, 4, v{T+3}")
    VOFFW, VWR, VOFFX = T + 5, T + 6, T + 8
    e(f"v_bfe_u32 v{T+2}, v0, 4, 1")
    e(f"v_lshlrev_b32 v{T+2}, 2, v{T+2}")
    e(f"v_and_b32 v{T+3}, 7, v0")
    e(f"v_xor_b32 v{T+2}, v{T+2}, v{T+3}")
    e(f"v_lshlrev_b32 v{T+2}, 4, v{T+2}")
    e(f"v_lshrrev_b32 v{T+3}, 3, v0")
    e(f"v_lshl_add_u32 v{VOFFW}, v{T+3}, 13, v{T+2}")
    e(f"v_bfe_u32 v{T+2}, v0, 2, 2")
    e(f"v_lshl_add_u32 v{T+3}, v{T}, 3, v{T+2}")
    e(f"v_lshlrev_b32 v{T+3}, 7, v{T+3}")
    e(f"v_add_u32 v{T+3}, s{S_RING}, v{T+3}")
    e(f"v_and_b32 v{T+4}, 3, v0")
    e(f"v_lshl_add_u32 v{T+3}, v{T+4}, 4, v{T+3}")
    e(f"v_lshrrev_b32 v{T+2}, 1, v{T+2}")
    e(f"v_lshl_add_u32 v{VWR}, v{T+2}, 6, v{T+3}")
    e(f"v_xor_b32 v{T+2}, 1, v{T+2}")
    e(f"v_lshl_add_u32 v{VWR+1}, v{T+2}, 6, v{T+3}")
    e(f"v_lshlrev_b32 v{T+2}, 10, v{T+1}")
    e(f"v_lshl_add_u32 v{VOFFX}, v{T}, 4, v{T+2}")
    for i in range(4):
        e(f"v_mov_b32 v{V_ONES+i}, 0x3f803f80")
    for j in range(5):
        e(f"v_mov_b32 v{V_M+j}, 0xff800000")
        e(f"v_mov_b32 v{V_MC+j}, 0xff800000")
        e(f"v_mov_b32 v{V_THR+j}, 0xff800000")
    e(f"v_mov_b32 v{V_FLAG}, {FLAGS}")
    e(f"v_mov_b32 v{T+2}, 0")
    e(f"s_lshl_b32 s{S_T3}, s{S_W}, 2")
    e(f"v_add_u32 v{T+3}, s{S_T3}, v{V_FLAG}")
    e(f"ds_write_b32 v{T+3}, v{T+2}")
    e("s_waitcnt lgkmcnt(0)")
    e(f"s_cmp_eq_u32 s{S_ISA}, 1")
    e(f"s_cselect_b64 s[{S_X}:{S_X+1}], s[4:5], s[14:15]")
    e(f"s_cselect_b64 s[{S_K}:{S_K+1}], s[6:7], s[16:17]")
    e(f"s_cselect_b64 s[{S_V}:{S_V+1}], s[8:9], s[18:19]")
    e(f"s_cselect_b64 s[{S_WQ}:{S_WQ+1}], s[10:11], s[20:21]")
    e(f"s_cselect_b64 s[{S_WO}:{S_WO+1}], s[12:13], s[22:23]")
    e(f"s_add_u32 s{S_X}, s{S_X}, s{S_T2}")
    e(f"s_addc_u32 s{S_X+1}, s{S_X+1}, 0")
    e(f"s_add_u32 s{S_K}, s{S_K}, s{S_T1}")
    e(f"s_addc_u32 s{S_K+1}, s{S_K+1}, 0")
    e(f"s_add_u32 s{S_V}, s{S_V}, s{S_T1}")
    e(f"s_addc_u32 s{S_V+1}, s{S_V+1}, 0")
    e(f"s_mov_b32 s{S_X+2}, 81920")
    e(f"s_mov_b32 s{S_K+2}, 131072")
    e(f"s_mov_b32 s{S_V+2}, 131072")
    e(f"s_mov_b32 s{S_WQ+2}, 4194304")
    e(f"s_mov_b32 s{S_WO+2}, 4194304")
    e(f"s_mov_b32 s{S_WS}, s28")
    e(f"s_mov_b32 s{S_WS+1}, s29")
    e(f"s_mov_b32 s{S_WS+2}, {WS_BYTES}")
    for s_ in (S_X, S_K, S_V, S_WQ, S_WO, S_WS):
        e(f"s_mov_b32 s{s_+3}, 0x20000")

    q = []
    done = [-1]

    def issue(tag, n=1):
        q.extend([tag] * n)

    def wait_tag(tag):
        last = max(i for i, t in enumerate(q) if t == tag)
        n = len(q) - 1 - last
        if last <= done[0]:
            return
        done[0] = last
        assert n <= 63
        e(f"s_waitcnt vmcnt({n})")

    def dma_kv(which, slot, goff_imm=None, tag=None):
        s_ = S_K if which == "K" else S_V
        out = []
        for half in range(2):
            out.append(f"s_add_u32 m0, s{S_RING}, {slot*SLOT + half*4096}")
            if goff_imm is not None:
                out.append(f"s_mov_b32 s{S_T3}, {goff_imm + half*4096}")
            else:
                out.append(f"s_add_u32 s{S_T3}, s{S_KOFF}, {half*4096}")
            for i in range(4):
                vo = V_OFFK + i if which == "K" else V_OFFV + (i & 1)
                out.append(f"buffer_load_dwordx4 v{vo}, {srd(s_)}, s{S_T3} offen offset:{i*1024} {nt_kv} lds")
        return out

    S_WC = S_T0
    e(f"s_lshl_b32 s{S_WC}, s{S_H}, 8")
    e(f"s_lshl_b32 s{S_T1}, s{S_PW}, 7")
    e(f"s_add_u32 s{S_WC}, s{S_WC}, s{S_T1}")
    WSLOT = [2, 3, 1, 2, 3, 1, 2, 3]
    A_X = 0
    A_WF = 160
    QACC = 144
    assert QACC + 80 <= VOFFW or True

    def group(n):
        for i in range(8):
            e(f"s_add_u32 m0, s{S_RING}, {WSLOT[n]*SLOT + i*1024}")
            e(f"s_add_u32 s{S_T3}, s{S_WC}, {(64*n + 8*i) * 8192}")
            e(f"buffer_load_dwordx4 v{VOFFW}, {srd(S_WQ)}, s{S_T3} offen {nt_w} lds")
        issue(f"G{n}", 8)
        for j in range(5):
            e(f"s_mov_b32 s{S_T3}, {j*16384}")
            for ks in range(2):
                d = A_X + (n & 3) * 40 + (ks * 5 + j) * 4
                e(f"buffer_load_dwordx4 {ar(d)}, v{VOFFX}, {srd(S_X)}, s{S_T3} offen offset:{(2*n+ks)*64}")
        issue(f"G{n}", 10)

    e(f"v_mov_b32 v240, v{VOFFW}")
    e(f"v_mov_b32 v241, v{VWR}")
    e(f"v_mov_b32 v242, v{VWR+1}")
    e(f"v_mov_b32 v243, v{VOFFX}")
    e(f"v_mov_b32 v244, v{T+10}")
    e(f"v_mov_b32 v245, v{T+11}")
    VOFFW, VWR, VOFFX = 240, 241, 243
    V_WOX, V_WOBASE = 244, 245
    group(0)
    group(1)
    group(2)
    for l in dma_kv("K", 0, goff_imm=0):
        e(l)
    issue("K0", 8)
    for n in range(8):
        wait_tag(f"G{n}")
        wf = A_WF + (n & 1) * 32
        for ks in range(2):
            for tp in range(4):
                sp, par = tp >> 1, tp & 1
                for hf in range(2):
                    off = WSLOT[n] * SLOT + 32 * ks * 128 + 4 * hf * 128 + 8 * par
                    d = wf + (ks * 4 + tp) * 4 + hf * 2
                    e(f"ds_read_b64_tr_b16 a[{d}:{d+1}], v{VWR+sp} offset:{off}")
        e("s_waitcnt lgkmcnt(0)")
        if n + 3 < 8:
            group(n + 3)
        elif n == 5:
            for l in dma_kv("V", 1, goff_imm=0):
                e(l)
            issue("V0", 8)
        elif n == 6:
            for l in dma_kv("K", 2, goff_imm=8192):
                e(l)
            issue("K1", 8)
        for ks in range(2):
            for j in range(5):
                for tp in range(4):
                    d = QACC + (tp * 5 + j) * 4
                    cc = "0" if (n == 0 and ks == 0) else vr(d)
                    e(f"v_mfma_f32_16x16x32_bf16 {vr(d)}, {ar(wf + (ks*4+tp)*4)}, {ar(A_X + (n&3)*40 + (ks*5+j)*4)}, {cc}")
    stamp()
    e("s_nop 7")
    for sp in range(2):
        for j in range(5):
            qd = V_Q + (sp * 5 + j) * 4
            for par in range(2):
                a = QACC + ((2 * sp + par) * 5 + j) * 4
                e(f"v_cvt_pk_bf16_f32 v{qd+2*par}, v{a}, v{a+1}")
                e(f"v_cvt_pk_bf16_f32 v{qd+2*par+1}, v{a+2}, v{a+3}")
    e(f"v_add_u32 v{T}, s{S_RING}, v{V_L16}")
    e(f"v_add_u32 v{T+1}, s{S_MISC}, v{V_L16}")
    e(f"v_add_u32 v{T+2}, s{S_PRING}, v{V_L16}")
    e(f"v_add_u32 v{T+3}, s{S_PMISC}, v{V_L16}")
    for f in range(10):
        if f < 8:
            e(f"ds_write_b128 v{T}, {vr(V_Q + f*4)} offset:{3*SLOT + f*1024}")
        else:
            e(f"ds_write_b128 v{T+1}, {vr(V_Q + f*4)} offset:{(f-8)*1024}")
    e("s_waitcnt lgkmcnt(0)")
    e("s_barrier")
    for f in range(10):
        if f < 8:
            e(f"ds_read_b128 {vr(V_Q + 40 + f*4)}, v{T+2} offset:{3*SLOT + f*1024}")
        else:
            e(f"ds_read_b128 {vr(V_Q + 40 + f*4)}, v{T+3} offset:{(f-8)*1024}")
    e("s_waitcnt lgkmcnt(0)")
    e("s_barrier")
    for l in dma_kv("V", 3, goff_imm=8192):
        e(l)
    issue("V1", 8)
    if dump == "Q":
        e(f"s_lshl_b32 s{S_T1}, s2, 2")
        e(f"s_add_u32 s{S_T1}, s{S_T1}, s{S_W}")
        e(f"s_mul_i32 s{S_T1}, s{S_T1}, 20480")
        for f in range(20):
            e(f"s_add_u32 s{S_T3}, s{S_T1}, {f*1024}")
            e(f"buffer_store_dwordx4 {vr(V_Q+f*4)}, v{V_L16}, {srd(S_WS)}, s{S_T3} offen")
        issue("D", 20)
    for i in range(180):
        e(f"v_accvgpr_write_b32 a{A_O+i}, 0")
    for i in range(32):
        e(f"v_mov_b32 v{V_VF+32+i}, 0")
    for i in range(8):
        e(f"v_mov_b32 v{V_P+i}, 0")

    def k_reads(par):
        out = []
        for kt in range(2):
            for s in range(4):
                d = A_KF + par * 32 + (kt * 4 + s) * 4
                out.append(f"ds_read_b128 {ar(d)}, v{V_KRD+s} offset:{(2*par)*SLOT + kt*4096}")
        return out

    def v_reads(par):
        out = []
        for t in range(8):
            for hf in range(2):
                d = V_VF + par * 32 + t * 4 + hf * 2
                out.append(f"ds_read_b64_tr_b16 v[{d}:{d+1}], v{V_VRD+t} offset:{(2*par+1)*SLOT + hf*4096}")
        return out

    wait_tag("K0")
    for l in k_reads(0):
        e(l)
    wait_tag("V0")
    for l in v_reads(0):
        e(l)
    e("s_waitcnt lgkmcnt(0)")
    for l in dma_kv("K", 0, goff_imm=2 * 8192):
        e(l)
    issue("K2", 8)
    for l in dma_kv("V", 1, goff_imm=2 * 8192):
        e(l)
    issue("V2", 8)
    if dump == "Q":
        e("s_waitcnt vmcnt(32)")
    e(f"s_mov_b32 s{S_KOFF}, {3*8192}")
    e(f"s_mov_b32 s{S_CNT}, 0")

    def qk(par, j, sb):
        out = []
        for kt in range(2):
            d = V_S + sb * 8 + kt * 4
            for s in range(4):
                cc = "0" if s == 0 else vr(d)
                out.append(f"v_mfma_f32_16x16x32_bf16 {vr(d)}, {ar(A_KF + par*32 + (kt*4+s)*4)}, {vr(V_Q + (s*5+j)*4)}, {cc}")
        return out

    def pv(par, j, pb):
        out = []
        for t in range(8):
            d = A_O + (t * 5 + j) * 4
            out.append(f"v_mfma_f32_16x16x32_bf16 {ar(d)}, {vr(V_VF + par*32 + t*4)}, {vr(V_P + pb*4)}, {ar(d)}")
        d = A_L + j * 4
        out.append(f"v_mfma_f32_16x16x32_bf16 {ar(d)}, {vr(V_ONES)}, {vr(V_P + pb*4)}, {ar(d)}")
        return out

    slow_blocks = []

    def sm(j, sb, uid):
        s = V_S + sb * 8
        p = V_P + sb * 4
        t0, t1 = V_T, V_T + 1
        G = []
        G.append([f"v_max3_f32 v{t0}, v{s}, v{s+1}, v{s+2}", f"v_max3_f32 v{t1}, v{s+3}, v{s+4}, v{s+5}"])
        G.append([f"v_max3_f32 v{t0}, v{t0}, v{s+6}, v{s+7}", f"v_max_f32 v{t0}, v{t0}, v{t1}"])
        G.append([f"v_cmp_gt_f32 vcc, v{t0}, v{V_THR+j}", f"s_cbranch_vccnz L_slow{uid}", f"L_ret{uid}:"])
        fm = [f"v_fma_f32 v{s+i}, v{s+i}, s{S_C}, -v{V_MC+j}" for i in range(8)]
        ex = [f"v_exp_f32 v{s+i}, v{s+i}" for i in range(8)]
        cv = [f"v_cvt_pk_bf16_f32 v{p+i}, v{s+2*i}, v{s+2*i+1}" for i in range(4)]
        G.append(fm[0:2])
        G.append(fm[2:4])
        G.append([ex[0]])
        G.append([ex[1]])
        G.append(fm[4:6])
        G.append([ex[2]])
        G.append([ex[3]])
        G.append(fm[6:8])
        G.append([ex[4]])
        G.append([ex[5], cv[0]])
        G.append([ex[6]])
        G.append([ex[7], cv[1]])
        G.append([cv[2]])
        G.append([cv[3]])
        slow_blocks.append((uid, j))
        return G

    for l in qk(0, 0, 0):
        e(l)
    e("s_nop 7")
    g.lab("L_loop")
    for par in range(2):
        for j in range(5):
            u = par * 5 + j
            sb = u & 1
            if j < 4:
                mq = qk(par, j + 1, sb ^ 1)
            else:
                mq = qk(par ^ 1, 0, sb ^ 1)
            if j > 0:
                mp = pv(par, j - 1, sb ^ 1)
            else:
                mp = pv(par ^ 1, 4, sb ^ 1)
            M = mq + mp
            G = sm(j, sb, u)
            extra = [[] for _ in range(17)]
            if j == 1:
                extra[0] = ["s_waitcnt vmcnt(24)"]
                r = k_reads(par ^ 1)
                for i in range(8):
                    extra[3 + i].append(r[i])
            if j == 2:
                d = dma_kv("K", 2 * (par ^ 1))
                extra[0] = ["s_waitcnt lgkmcnt(0)"]
                extra[3] += d[0:3]
                extra[5] += [d[3]]
                extra[6] += [d[4]]
                extra[8] += [d[5]]
                extra[9] += d[6:9]
                extra[11] += [d[9]]
                extra[13] += [d[10]]
                extra[15] += [d[11]]
            if j == 3:
                extra[0] = ["s_waitcnt vmcnt(24)"]
                r = v_reads(par ^ 1)
                for i in range(16):
                    extra[1 + i].append(r[i])
            if j == 4:
                d = dma_kv("V", 2 * (par ^ 1) + 1)
                extra[0] = ["s_waitcnt lgkmcnt(0)"]
                extra[3] += d[0:3]
                extra[5] += [d[3]]
                extra[6] += [d[4]]
                extra[8] += [d[5]]
                extra[9] += d[6:9]
                extra[11] += [d[9]]
                extra[13] += [d[10]]
                extra[15] += [d[11]]
                extra[16] += [f"s_add_u32 s{S_KOFF}, s{S_KOFF}, 8192"]
            g.c(f"---- step par={par} j={j}")
            for i in range(17):
                if i == 0:
                    for x in extra[0]:
                        e(x)
                e(M[i])
                for x in G[i]:
                    if x.endswith(":"):
                        g.raw(x)
                    else:
                        e(x)
                if i > 0:
                    for x in extra[i]:
                        e(x)
    e(f"s_add_u32 s{S_CNT}, s{S_CNT}, 1")
    e(f"s_cmp_lt_u32 s{S_CNT}, 8")
    e("s_cbranch_scc1 L_loop")
    e("s_nop 1")
    for l in pv(1, 4, 1):
        e(l)
    stamp()
    e("s_branch L_epi")
    for uid, j in slow_blocks:
        t0, t1, t2, t3 = V_T, V_T + 1, V_T + 2, V_T + 3
        g.lab(f"L_slow{uid}")
        e(f"v_mov_b32 v{t1}, v{t0}")
        e("s_nop 1")
        e(f"v_permlane32_swap_b32 v{t0}, v{t1}")
        e(f"v_max_f32 v{t0}, v{t0}, v{t1}")
        e(f"v_mov_b32 v{t1}, v{t0}")
        e("s_nop 1")
        e(f"v_permlane16_swap_b32 v{t0}, v{t1}")
        e(f"v_max_f32 v{t0}, v{t0}, v{t1}")
        e(f"v_max_f32 v{V_M+j}, v{V_M+j}, v{t0}")
        e(f"v_mul_f32 v{t1}, s{S_C}, v{V_M+j}")
        e(f"v_sub_f32 v{t2}, v{V_MC+j}, v{t1}")
        e(f"v_exp_f32 v{t2}, v{t2}")
        e(f"v_mov_b32 v{V_MC+j}, v{t1}")
        e(f"v_add_f32 v{V_THR+j}, s{S_THR}, v{V_M+j}")
        regs = [A_O + (t * 5 + j) * 4 + r for t in range(8) for r in range(4)] + [A_L + j * 4 + r for r in range(4)]
        for k in range(0, 36, 2):
            e(f"v_accvgpr_read_b32 v{t1}, a{regs[k]}")
            e(f"v_accvgpr_read_b32 v{t3}, a{regs[k+1]}")
            e(f"v_mul_f32 v{t1}, v{t1}, v{t2}")
            e(f"v_mul_f32 v{t3}, v{t3}, v{t2}")
            e(f"v_accvgpr_write_b32 a{regs[k]}, v{t1}")
            e(f"v_accvgpr_write_b32 a{regs[k+1]}, v{t3}")
        e("s_nop 1")
        e(f"s_branch L_ret{uid}")
    g.lab("L_epi")

    def signal(val):
        e(f"v_mov_b32 v{T+8}, {val}")
        e("s_waitcnt lgkmcnt(0)")
        e(f"ds_write_b32 v{T+6}, v{T+8}")

    wcnt = [0]

    def wait_partner(val):
        k = wcnt[0]
        wcnt[0] += 1
        g.lab(f"L_wp{k}")
        e(f"ds_read_b32 v{T+8}, v{T+7}")
        e("s_waitcnt lgkmcnt(0)")
        e(f"v_readfirstlane_b32 s{S_T3}, v{T+8}")
        e("s_nop 0")
        e(f"s_cmp_ge_u32 s{S_T3}, {val}")
        e(f"s_cbranch_scc1 L_wd{k}")
        e("s_sleep 1")
        e(f"s_branch L_wp{k}")
        g.lab(f"L_wd{k}")

    e("s_waitcnt vmcnt(0)")
    e(f"v_add_u32 v{T}, s{S_RING}, v{V_L16}")
    e(f"v_add_u32 v{T+1}, s{S_PRING}, v{V_L16}")
    e(f"v_lshlrev_b32 v{T+4}, 2, v0")
    e(f"v_add_u32 v{T+2}, s{S_MISC}, v{T+4}")
    e(f"v_add_u32 v{T+3}, s{S_PMISC}, v{T+4}")
    e(f"s_lshl_b32 s{S_T3}, s{S_W}, 2")
    e(f"v_add_u32 v{T+6}, s{S_T3}, v{V_FLAG}")
    e(f"s_xor_b32 s{S_T3}, s{S_T3}, 4")
    e(f"v_add_u32 v{T+7}, s{S_T3}, v{V_FLAG}")
    e("s_nop 4")
    for f in range(20):
        e(f"ds_write_b128 v{T}, {ar(A_O + 80 + f*4)} offset:{f*1024}")
    VL = V_S
    for j in range(5):
        e(f"v_accvgpr_read_b32 v{VL+j}, a{A_L + j*4}")
    for j in range(5):
        e(f"ds_write_b32 v{T+2}, v{V_MC+j} offset:{j*256}")
        e(f"ds_write_b32 v{T+2}, v{VL+j} offset:{(5+j)*256}")
    signal(1)
    wait_partner(1)
    RX = V_Q
    for f in range(20):
        e(f"ds_read_b128 {vr(RX + f*4)}, v{T+1} offset:{f*1024}")
    for j in range(5):
        e(f"ds_read_b32 v{VL+5+j}, v{T+3} offset:{j*256}")
        e(f"ds_read_b32 v{VL+10+j}, v{T+3} offset:{(5+j)*256}")
    e("s_waitcnt lgkmcnt(0)")
    SO, SP = V_M, V_THR
    for j in range(5):
        e(f"v_max_f32 v{T+8}, v{V_MC+j}, v{VL+5+j}")
        e(f"v_sub_f32 v{T+9}, v{V_MC+j}, v{T+8}")
        e(f"v_sub_f32 v{T+10}, v{VL+5+j}, v{T+8}")
        e(f"v_exp_f32 v{T+9}, v{T+9}")
        e(f"v_exp_f32 v{T+10}, v{T+10}")
        e("s_nop 0")
        e(f"v_mul_f32 v{T+8}, v{T+9}, v{VL+j}")
        e(f"v_fma_f32 v{T+8}, v{T+10}, v{VL+10+j}, v{T+8}")
        e(f"v_rcp_f32 v{T+8}, v{T+8}")
        e("s_nop 0")
        e(f"v_mul_f32 v{SO+j}, v{T+9}, v{T+8}")
        e(f"v_mul_f32 v{SP+j}, v{T+10}, v{T+8}")
    OF = V_VF
    for tau in range(4):
        for j in range(5):
            f = tau * 5 + j
            for r in range(4):
                e(f"v_accvgpr_read_b32 v{T+8+r}, a{A_O + f*4 + r}")
            for r in range(4):
                e(f"v_mul_f32 v{RX + f*4 + r}, v{RX + f*4 + r}, v{SP+j}")
            for r in range(4):
                e(f"v_fma_f32 v{RX + f*4 + r}, v{T+8+r}, v{SO+j}, v{RX + f*4 + r}")
            od = OF + ((tau >> 1) * 5 + j) * 4 + (tau & 1) * 2
            e(f"v_cvt_pk_bf16_f32 v{od}, v{RX+f*4}, v{RX+f*4+1}")
            e(f"v_cvt_pk_bf16_f32 v{od+1}, v{RX+f*4+2}, v{RX+f*4+3}")
    for f in range(10):
        e(f"ds_write_b128 v{T}, {vr(OF + f*4)} offset:{20480 + f*1024}")
    signal(2)
    wait_partner(2)
    A_OF = 0
    for f in range(10):
        e(f"ds_read_b128 {ar(A_OF + f*4)}, v{T} offset:{20480 + f*1024}")
    for f in range(10):
        e(f"ds_read_b128 {ar(A_OF + 40 + f*4)}, v{T+1} offset:{20480 + f*1024}")
    signal(3)
    wait_partner(3)
    stamp()
    if dump == "O":
        e(f"s_lshl_b32 s{S_T1}, s2, 2")
        e(f"s_add_u32 s{S_T1}, s{S_T1}, s{S_W}")
        e(f"s_mul_i32 s{S_T1}, s{S_T1}, 20480")
        e(f"s_add_u32 s{S_T1}, s{S_T1}, {64*1024*1024}")
        for f in range(20):
            e(f"s_add_u32 s{S_T3}, s{S_T1}, {f*1024}")
            e(f"buffer_store_dwordx4 {ar(A_OF+f*4)}, v{V_L16}, {srd(S_WS)}, s{S_T3} offen")
        e("s_waitcnt vmcnt(0)")
    VOWO = T + 12
    VWRD = T + 16
    e(f"v_lshrrev_b32 v{T}, 4, v0")
    e(f"v_and_b32 v{T+1}, 15, v0")
    for i in range(2):
        e(f"v_add_u32 v{T+2}, {4*i}, v{T}")
        e(f"v_lshlrev_b32 v{T+2}, 1, v{T+2}")
        e(f"v_xor_b32 v{T+2}, v{T+2}, v{T+1}")
        e(f"v_lshlrev_b32 v{T+2}, 4, v{T+2}")
        e(f"v_lshl_add_u32 v{VOWO+i}, v{T}, 10, v{T+2}")
    for t in range(8):
        e(f"v_xor_b32 v{T+4}, {2*t}, v{V_WOX}")
        e(f"v_lshl_add_u32 v{VWRD+t}, v{T+4}, 4, v{V_WOBASE}")
    S_WOB = S_T0
    e(f"s_lshl_b32 s{S_WOB}, s{S_H}, 17")
    e(f"s_lshl_b32 s{S_T1}, s{S_PW}, 9")
    e(f"s_add_u32 s{S_WOB}, s{S_WOB}, s{S_T1}")
    S_SIGX = S_T1
    e(f"s_lshl_b32 s{S_SIGX}, s{S_PW}, 16")
    S_PB = S_T2
    e(f"s_xor_b32 s{S_PB}, s{S_ISA}, 1")
    e(f"s_lshl_b32 s{S_PB}, s{S_PB}, 3")
    e(f"s_add_u32 s{S_PB}, s{S_PB}, s{S_B}")
    e(f"s_lshl_b32 s{S_PB}, s{S_PB}, 5")
    e(f"s_add_u32 s{S_PB}, s{S_PB}, s{S_H}")
    e(f"s_mul_i32 s{S_PB}, s{S_PB}, {PART_HEAD}")
    e(f"s_mul_i32 s{S_T3}, s{S_PW}, 40960")
    e(f"s_add_u32 s{S_PB}, s{S_PB}, s{S_T3}")
    q.clear()
    done[0] = -1

    def wo_chunk(c):
        qq, sg = c >> 2, c & 3
        e(f"s_xor_b32 s{S_CNT}, s{S_SIGX}, {sg*32768}")
        e(f"s_add_u32 s{S_CNT}, s{S_CNT}, s{S_WOB}")
        for i in range(8):
            e(f"s_add_u32 m0, s{S_RING}, {(c&3)*SLOT + i*1024}")
            e(f"s_add_u32 s{S_T3}, s{S_CNT}, {qq*256 + i*4096}")
            e(f"buffer_load_dwordx4 v{VOWO + (i&1)}, {srd(S_WO)}, s{S_T3} offen {nt_w} lds")
        issue(f"W{c}", 8)

    for c in range(4):
        wo_chunk(c)
    YACC = 40
    A_WF2 = 80
    PK = 200
    for c in range(8):
        qq, sg = c >> 2, c & 3
        wait_tag(f"W{c}")
        wf = A_WF2 + (c & 1) * 32
        for t in range(8):
            for hf in range(2):
                d = wf + t * 4 + hf * 2
                e(f"ds_read_b64_tr_b16 a[{d}:{d+1}], v{VWRD+t} offset:{(c&3)*SLOT + hf*4096}")
        e("s_waitcnt lgkmcnt(0)")
        if c + 4 < 8:
            wo_chunk(c + 4)
        for t in range(8):
            for j in range(5):
                d = YACC + (t * 5 + j) * 4
                cc = "0" if sg == 0 else vr(d)
                e(f"v_mfma_f32_16x16x32_bf16 {vr(d)}, {ar(wf + t*4)}, {ar(A_OF + (sg*5+j)*4)}, {cc}")
        if sg == 3:
            e("s_nop 7")
            for u in range(4):
                for j in range(5):
                    pk = PK + ((u * 5 + j) & 1) * 4
                    for par in range(2):
                        a = YACC + ((2 * u + par) * 5 + j) * 4
                        e(f"v_cvt_pk_bf16_f32 v{pk+2*par}, v{a}, v{a+1}")
                        e(f"v_cvt_pk_bf16_f32 v{pk+2*par+1}, v{a+2}, v{a+3}")
                    e(f"s_add_u32 s{S_T3}, s{S_PB}, {qq*20480 + (u*5+j)*1024}")
                    e(f"buffer_store_dwordx4 {vr(pk)}, v{V_L16}, {srd(S_WS)}, s{S_T3} offen")
                    issue("ST", 1)
    if stamps:
        e("s_waitcnt vmcnt(0)")
        stamp()
        n = nst[0]
        e(f"s_lshl_b32 s{S_T1}, s2, 2")
        e(f"s_add_u32 s{S_T1}, s{S_T1}, s{S_W}")
        e(f"s_mul_i32 s{S_T1}, s{S_T1}, {n*8}")
        e(f"s_add_u32 s{S_T1}, s{S_T1}, {WS_BYTES - 256*4*n*8}")
        e("s_waitcnt lgkmcnt(0)")
        e("v_mov_b32 v8, 0")
        e("s_mov_b64 exec, 1")
        for k in range(n):
            e(f"v_mov_b32 v4, s{S_STAMP+2*k}")
            e(f"v_mov_b32 v5, s{S_STAMP+2*k+1}")
            e(f"buffer_store_dwordx2 v[4:5], v8, {srd(S_WS)}, s{S_T1} offen offset:{k*8}")
            e("s_nop 1")
        print("stamps:", n)
    g.lab("L_end1")
    e("s_endpgm")

    g.raw(".globl reduce_kernel")
    g.raw(".p2align 8")
    g.raw(".type reduce_kernel,@function")
    g.lab("reduce_kernel")
    e("s_cmp_ge_u32 s2, 512")
    e("s_cbranch_scc1 L_end2")
    e("s_load_dwordx2 s[4:5], s[0:1], 80")
    e("s_load_dwordx2 s[6:7], s[0:1], 96")
    e("v_lshrrev_b32 v1, 6, v0")
    e("v_and_b32 v2, 63, v0")
    e("v_readfirstlane_b32 s10, v1")
    e("s_and_b32 s11, s2, 31")
    e("s_lshr_b32 s12, s2, 5")
    e(f"s_mul_i32 s13, s12, {32*PART_HEAD}")
    e(f"s_mul_i32 s14, s10, {8*PART_HEAD}")
    e("s_add_u32 s13, s13, s14")
    e("s_mul_i32 s14, s11, 2560")
    e("s_add_u32 s13, s13, s14")
    e("v_lshrrev_b32 v3, 5, v2")
    e(f"s_mov_b32 s15, {PART_HEAD}")
    e("v_mul_lo_u32 v3, v3, s15")
    e("v_and_b32 v4, 31, v2")
    e("v_lshl_add_u32 v3, v4, 4, v3")
    e("s_waitcnt lgkmcnt(0)")
    e("s_mov_b32 s16, s6")
    e("s_mov_b32 s17, s7")
    e(f"s_mov_b32 s18, {WS_BYTES}")
    e("s_mov_b32 s19, 0x20000")
    e("s_mov_b32 s20, s4")
    e("s_mov_b32 s21, s5")
    e("s_mov_b32 s22, 1310720")
    e("s_mov_b32 s23, 0x20000")
    for y in range(4):
        e(f"s_add_u32 s14, s13, {2*y*PART_HEAD}")
        for ee in range(5):
            e(f"buffer_load_dwordx4 {vr(64 + (y*5+ee)*4)}, v3, s[16:19], s14 offen offset:{ee*512}")
    e("s_mov_b32 s24, 0x00003f80")
    e("s_mov_b32 s25, 0x3f800000")
    for i in range(40):
        e(f"v_mov_b32 v{16+i}, 0")
    for y in range(4):
        e(f"s_waitcnt vmcnt({15 - 5*y})")
        for ee in range(5):
            for r in range(4):
                x = 64 + (y * 5 + ee) * 4 + r
                e(f"v_dot2c_f32_bf16 v{16 + ee*8 + 2*r}, s24, v{x}")
                e(f"v_dot2c_f32_bf16 v{16 + ee*8 + 2*r + 1}, s25, v{x}")
    e("s_mul_i32 s14, s10, 10240")
    e("v_lshlrev_b32 v5, 4, v2")
    e("v_add_u32 v5, s14, v5")
    e("s_nop 2")
    for ee in range(5):
        for h2 in range(2):
            e(f"ds_write_b128 v5, {vr(16 + ee*8 + h2*4)} offset:{(ee*2+h2)*1024}")
    e("s_waitcnt lgkmcnt(0)")
    e("s_barrier")
    e("v_cmp_gt_u32 vcc, 160, v0")
    e("s_and_saveexec_b64 s[26:27], vcc")
    e("s_cbranch_execz L_end2")
    e("v_lshrrev_b32 v6, 5, v0")
    e("v_and_b32 v7, 31, v0")
    e("v_lshlrev_b32 v8, 11, v6")
    e("v_lshl_add_u32 v8, v7, 4, v8")
    k = 0
    for w in range(4):
        for hl in range(2):
            for h2 in range(2):
                e(f"ds_read_b128 {vr(64 + k*4)}, v8 offset:{w*10240 + h2*1024 + hl*512}")
                k += 1
    e("s_and_b32 s14, s11, 7")
    e("s_mul_i32 s14, s14, 5")
    e("v_add_u32 v9, s14, v6")
    e("v_lshrrev_b32 v10, 1, v9")
    e("v_and_b32 v9, 1, v9")
    e("v_mul_u32_u24 v11, 13, v10")
    e("v_lshrrev_b32 v11, 6, v11")
    e("v_mul_u32_u24 v12, 5, v11")
    e("v_sub_u32 v12, v10, v12")
    e("v_lshl_add_u32 v13, v9, 5, v7")
    e("v_and_b32 v14, 15, v13")
    e("v_lshl_add_u32 v14, v12, 4, v14")
    e("v_lshrrev_b32 v13, 4, v13")
    e("v_lshlrev_b32 v13, 2, v13")
    e("v_lshl_add_u32 v13, v11, 5, v13")
    e("s_lshr_b32 s14, s11, 3")
    e("s_lshl_b32 s14, s14, 7")
    e("s_lshr_b32 s15, s12, 3")
    e("s_lshl_b32 s15, s15, 9")
    e("s_add_u32 s14, s14, s15")
    e("s_and_b32 s15, s12, 7")
    e("s_mul_i32 s15, s15, 81920")
    e("s_add_u32 s14, s14, s15")
    e("v_add_u32 v13, s14, v13")
    e("v_lshl_add_u32 v13, v14, 10, v13")
    e("v_lshlrev_b32 v13, 1, v13")
    e("s_waitcnt lgkmcnt(0)")
    for i in range(8):
        h2, r = i >> 2, i & 3
        srcs = [64 + (kk * 2 + h2) * 4 + r for kk in range(8)]
        e(f"v_add_f32 v{16+i}, v{srcs[0]}, v{srcs[1]}")
        for s_ in srcs[2:]:
            e(f"v_add_f32 v{16+i}, v{16+i}, v{s_}")
    for i in range(4):
        e(f"v_cvt_pk_bf16_f32 v{24+i}, v{16+2*i}, v{17+2*i}")
    e("buffer_store_dwordx2 v[24:25], v13, s[20:23], 0 offen")
    e("buffer_store_dwordx2 v[26:27], v13, s[20:23], 0 offen offset:32")
    g.lab("L_end2")
    e("s_endpgm")

    g.raw('.section .rodata,"a"')
    for nm, nv, ao in (("attn_kernel", 512, 256), ("reduce_kernel", 160, 160)):
        g.raw(".p2align 6")
        g.raw(f".amdhsa_kernel {nm}")
        g.raw(f"  .amdhsa_next_free_vgpr {nv}")
        g.raw("  .amdhsa_next_free_sgpr 102")
        g.raw(f"  .amdhsa_accum_offset {ao}")
        g.raw("  .amdhsa_group_segment_fixed_size 0")
        g.raw("  .amdhsa_kernarg_size 104")
        g.raw("  .amdhsa_user_sgpr_count 2")
        g.raw("  .amdhsa_user_sgpr_kernarg_segment_ptr 1")
        g.raw("  .amdhsa_system_sgpr_workgroup_id_x 1")
        g.raw("  .amdhsa_float_denorm_mode_32 3")
        g.raw(".end_amdhsa_kernel")
    return g.text()


if __name__ == "__main__":
    t = gen()
    check(t)
    open("v1.s", "w").write(t)
    open("v1_st.s", "w").write(gen(stamps=True))
    open("v1_def.s", "w").write(gen(nt_kv=""))
    open("v1_dq.s", "w").write(gen(dump="Q"))
    open("v1_do.s", "w").write(gen(dump="O"))
    open("v1_ntw.s", "w").write(gen(nt_w="nt"))
    open("v1_ntw_st.s", "w").write(gen(nt_w="nt", stamps=True))
```

```python
import sys, struct, math
from asmlib import Asm, check

NAME = "concat_heads__gqa_block_cached__mha_block_cached__near_ridge"
HDR = open("cdna_kernels/" + NAME + ".s.ref").read().split("; Override launch")[0]


def f2u(x):
    return struct.unpack("<I", struct.pack("<f", x))[0]


SCALE_C = math.log2(math.e) / math.sqrt(128.0)
THR_T = 8.0
WS_BYTES = 268435456
PART = 81920
FLAG_BASE = 32 * 1024 * 1024

S_X, S_WQ, S_K, S_V, S_WO, S_WS, S_OUT, S_DBG = 32, 36, 40, 44, 48, 52, 56, 60
S_W, S_PW, S_ISA, S_B, S_H0, S_RING, S_MISC, S_C, S_CNT, S_KOFF = 64, 65, 66, 67, 68, 69, 70, 71, 72, 73
S_T0, S_T1, S_T2, S_T3 = 74, 75, 76, 77
S_PRING, S_PMISC, S_THR, S_VOFF, S_HALF, S_STEP, S_DRING, S_P = 78, 79, 80, 81, 82, 83, 30, 31
S_ROT, S_X3, S_WOB = 3, 100, 101
S_STAMP = 84

V_OFFK = 1
V_OFFV = 5
V_KRD = 9
V_VRD = 13
V_M = 21
V_MC = 26
V_THR = 31
V_ONES = 36
V_Q = 40
V_S = 120
V_P = 136
V_VF = 144
V_T = 208
V_L16 = 232
V_OFFW = 233
V_WRD = 240
V_QA = 248
V_F0, V_FOFF, V_POFF, V_C0 = 237, 238, 239, 253
A_O = 0
A_L = 160
A_KF = 180

RING = 32768
SLOT = 8192
MISC0 = 131072


def srd(n):
    return f"s[{n}:{n+3}]"


def vr(b, n=4):
    return f"v[{b}:{b+n-1}]"


def ar(b, n=4):
    return f"a[{b}:{b+n-1}]"


def gen(nt_kv="", stamps=None, st_flag="sc1", poll_sleep=1):
    g = Asm()
    e = g.e
    g.raw(HDR.rstrip("\n"))
    g.raw("; @launch grid=(256,1,1) block=(256,1,1) lds=163840")
    g.raw('.amdgcn_target "amdgcn-amd-amdhsa--gfx950"')
    g.raw(".text")
    g.raw(f".globl {NAME}_kernel")
    g.raw(".p2align 8")
    g.raw(f".type {NAME}_kernel,@function")
    g.lab(f"{NAME}_kernel")
    stamps = stamps or []

    def stamp(name):
        if name in stamps:
            k = stamps.index(name)
            e(f"s_memrealtime s[{S_STAMP+2*k}:{S_STAMP+2*k+1}]")

    T = V_T
    e("s_cmp_ge_u32 s2, 256")
    e("s_cbranch_scc1 L_end")
    stamp("start")
    e("s_load_dwordx16 s[4:19], s[0:1], 0")
    e("s_load_dwordx8 s[20:27], s[0:1], 64")
    e("s_load_dwordx2 s[28:29], s[0:1], 96")
    e("v_lshrrev_b32 v1, 6, v0")
    e("v_and_b32 v0, 63, v0")
    e(f"v_readfirstlane_b32 s{S_W}, v1")
    e(f"s_and_b32 s{S_T0}, s2, 7")
    e(f"s_lshr_b32 s{S_T1}, s2, 3")
    e(f"s_and_b32 s{S_ISA}, s{S_T1}, 1")
    e(f"s_lshr_b32 s{S_B}, s{S_T1}, 2")
    e(f"s_bfe_u32 s{S_T1}, s{S_T1}, 0x10001")
    e(f"s_lshl_b32 s{S_P}, s{S_T0}, 1")
    e(f"s_add_u32 s{S_P}, s{S_P}, s{S_T1}")
    e(f"s_lshl_b32 s{S_H0}, s{S_P}, 1")
    e(f"s_lshl_b32 s{S_ROT}, s{S_T1}, 2")
    e(f"s_add_u32 s{S_ROT}, s{S_ROT}, s{S_B}")
    e(f"s_and_b32 s{S_PW}, s{S_W}, 1")
    e(f"s_lshl_b32 s{S_RING}, s{S_W}, 15")
    e(f"s_mov_b32 s{S_DRING}, s{S_RING}")
    e(f"s_xor_b32 s{S_PRING}, s{S_RING}, {RING}")
    e(f"s_lshl_b32 s{S_MISC}, s{S_W}, 13")
    e(f"s_add_u32 s{S_MISC}, s{S_MISC}, {MISC0}")
    e(f"s_xor_b32 s{S_PMISC}, s{S_MISC}, 8192")
    e(f"s_mov_b32 s{S_C}, {f2u(SCALE_C):#x}")
    e(f"s_mov_b32 s{S_THR}, {f2u(THR_T / SCALE_C):#x}")
    e(f"s_lshl_b32 s{S_T1}, s{S_B}, 5")
    e(f"s_add_u32 s{S_T1}, s{S_T1}, s{S_H0}")
    e(f"s_lshr_b32 s{S_T2}, s{S_W}, 1")
    e(f"s_add_u32 s{S_T1}, s{S_T1}, s{S_T2}")
    e(f"s_lshl_b32 s{S_T2}, s{S_B}, 3")
    e(f"s_add_u32 s{S_T2}, s{S_T2}, s{S_T0}")
    e(f"s_cmp_eq_u32 s{S_ISA}, 1")
    e(f"s_cselect_b32 s{S_T1}, s{S_T2}, s{S_T1}")
    e(f"s_lshl_b32 s{S_T1}, s{S_T1}, 18")
    e(f"s_lshl_b32 s{S_T2}, s{S_PW}, 17")
    e(f"s_add_u32 s{S_T1}, s{S_T1}, s{S_T2}")
    e(f"s_mul_i32 s{S_T2}, s{S_B}, 81920")
    e(f"s_cmp_lt_u32 s{S_W}, 2")
    e(f"s_cselect_b32 s{S_X3}, 8, 4")
    e(f"s_add_u32 s{S_X3}, s{S_X3}, s{S_W}")
    OFFWQ, OFFX, XR, WR = V_QA, V_QA + 2, V_QA + 3, 224
    e(f"v_lshrrev_b32 v{T}, 4, v0")
    e(f"v_and_b32 v{T+1}, 15, v0")
    e(f"v_lshlrev_b32 v{V_L16}, 4, v0")
    e(f"v_lshrrev_b32 v{T+2}, 5, v0")
    e(f"v_and_b32 v{T+3}, 31, v0")
    for i in range(2):
        e(f"v_add_u32 v{T+4}, {2*i}, v{T+2}")
        e(f"v_lshlrev_b32 v{T+4}, 2, v{T+4}")
        e(f"v_xor_b32 v{T+4}, v{T+4}, v{T+3}")
        e(f"v_lshlrev_b32 v{T+4}, 4, v{T+4}")
        e(f"v_lshl_add_u32 v{OFFWQ+i}, v{T+2}, 13, v{T+4}")
    e(f"s_lshl_b32 s{S_T3}, s{S_PW}, 2")
    e(f"v_add_u32 v{T+4}, s{S_T3}, v{T}")
    e(f"v_and_b32 v{T+5}, 7, v0")
    e(f"v_xor_b32 v{T+4}, v{T+4}, v{T+5}")
    e(f"v_lshlrev_b32 v{T+4}, 4, v{T+4}")
    e(f"v_lshrrev_b32 v{T+5}, 3, v0")
    e(f"v_lshl_add_u32 v{OFFX}, v{T+5}, 10, v{T+4}")
    for i in range(4):
        e(f"v_add_u32 v{T+2}, {4*i}, v{T}")
        e(f"v_xor_b32 v{T+2}, v{T+2}, v{T+1}")
        e(f"v_lshlrev_b32 v{T+2}, 4, v{T+2}")
        e(f"v_lshl_add_u32 v{V_OFFK+i}, v{T}, 8, v{T+2}")
    e("s_waitcnt lgkmcnt(0)")
    e(f"s_cmp_eq_u32 s{S_ISA}, 1")
    e(f"s_cselect_b64 s[{S_X}:{S_X+1}], s[4:5], s[14:15]")
    e(f"s_cselect_b64 s[{S_K}:{S_K+1}], s[6:7], s[16:17]")
    e(f"s_cselect_b64 s[{S_V}:{S_V+1}], s[8:9], s[18:19]")
    e(f"s_cselect_b64 s[{S_WQ}:{S_WQ+1}], s[10:11], s[20:21]")
    e(f"s_cselect_b64 s[{S_WO}:{S_WO+1}], s[12:13], s[22:23]")
    e(f"s_add_u32 s{S_X}, s{S_X}, s{S_T2}")
    e(f"s_addc_u32 s{S_X+1}, s{S_X+1}, 0")
    e(f"s_add_u32 s{S_K}, s{S_K}, s{S_T1}")
    e(f"s_addc_u32 s{S_K+1}, s{S_K+1}, 0")
    e(f"s_add_u32 s{S_V}, s{S_V}, s{S_T1}")
    e(f"s_addc_u32 s{S_V+1}, s{S_V+1}, 0")
    e(f"s_mov_b32 s{S_X+2}, 81920")
    e(f"s_mov_b32 s{S_K+2}, 131072")
    e(f"s_mov_b32 s{S_V+2}, 131072")
    e(f"s_mov_b32 s{S_WQ+2}, 4194304")
    e(f"s_mov_b32 s{S_WO+2}, 4194304")
    e(f"s_mov_b32 s{S_WS}, s28")
    e(f"s_mov_b32 s{S_WS+1}, s29")
    e(f"s_mov_b32 s{S_WS+2}, {WS_BYTES}")
    e(f"s_mov_b32 s{S_OUT}, s24")
    e(f"s_mov_b32 s{S_OUT+1}, s25")
    e(f"s_mov_b32 s{S_OUT+2}, 1310720")
    e(f"s_mov_b32 s{S_DBG}, s26")
    e(f"s_mov_b32 s{S_DBG+1}, s27")
    e(f"s_mov_b32 s{S_DBG+2}, 256")
    for s_ in (S_X, S_K, S_V, S_WQ, S_WO, S_WS, S_OUT, S_DBG):
        e(f"s_mov_b32 s{s_+3}, 0x20000")
    e(f"s_mov_b32 s{S_HALF}, 4096")
    e(f"s_mov_b32 s{S_STEP}, 8192")

    q = []
    done = [-1]

    def issue(tag, n=1):
        q.extend([tag] * n)

    def wait_tag(tag):
        last = max(i for i, t in enumerate(q) if t == tag)
        n = len(q) - 1 - last
        if last <= done[0]:
            return
        done[0] = last
        assert n <= 63, n
        e(f"s_waitcnt vmcnt({n})")

    def dma_kv(which, slot, goff_imm=None):
        s_ = S_K if which == "K" else S_V
        so = S_KOFF if which == "K" else S_VOFF
        out = []
        for half in range(2):
            out.append(f"s_add_u32 m0, s{S_DRING}, {slot*SLOT + half*4096}")
            if goff_imm is not None:
                out.append(f"s_mov_b32 s{S_T3}, {goff_imm + half*4096}")
            elif half == 0:
                out.append(f"s_mov_b32 s{S_T3}, s{so}")
            else:
                out.append(f"s_add_u32 s{S_T3}, s{so}, s{S_HALF}")
            for i in range(4):
                vo = (V_OFFK if which == "K" else V_OFFV) + i
                out.append(f"buffer_load_dwordx4 v{vo}, {srd(s_)}, s{S_T3} offen offset:{i*1024} {nt_kv} lds")
        return out

    S_WC = S_T0
    e(f"s_lshl_b32 s{S_WC}, s{S_W}, 17")
    e(f"s_lshl_b32 s{S_T1}, s{S_H0}, 8")
    e(f"s_add_u32 s{S_WC}, s{S_WC}, s{S_T1}")
    S_KC = S_T1
    S_XW = S_T2

    e(f"s_lshl_b32 s{S_XW}, s{S_W}, 13")

    def wslot(n):
        return 1 + ((n + 1) % 3)

    def chunk(n):
        out = []
        out.append(f"s_add_u32 s{S_KC}, s{S_ROT}, {n}")
        out.append(f"s_and_b32 s{S_KC}, s{S_KC}, 7")
        out.append(f"s_lshl_b32 s{S_CNT}, s{S_KC}, 19")
        out.append(f"s_add_u32 s{S_CNT}, s{S_CNT}, s{S_WC}")
        for i in range(8):
            out.append(f"s_add_u32 m0, s{S_RING}, {wslot(n)*SLOT + i*1024}")
            out.append(f"s_add_u32 s{S_T3}, s{S_CNT}, {i*16384}")
            out.append(f"buffer_load_dwordx4 v{OFFWQ + (i&1)}, {srd(S_WQ)}, s{S_T3} offen lds")
        out.append(f"s_lshl_b32 s{S_KC}, s{S_KC}, 7")
        xb = MISC0 + (n % 3) * 10240
        for k in range(3):
            if k < 2:
                out.append(f"s_lshl_b32 s{S_CNT}, s{S_W}, 10")
                out.append(f"s_add_u32 m0, s{S_CNT}, {xb + k*4096}")
                out.append(f"s_add_u32 s{S_T3}, s{S_XW}, {k*32768}")
            else:
                out.append(f"s_lshl_b32 s{S_CNT}, s{S_X3}, 10")
                out.append(f"s_add_u32 m0, s{S_CNT}, {xb}")
                out.append(f"s_lshl_b32 s{S_T3}, s{S_X3}, 13")
            out.append(f"s_add_u32 s{S_T3}, s{S_T3}, s{S_KC}")
            out.append(f"buffer_load_dwordx4 v{OFFX}, {srd(S_X)}, s{S_T3} offen lds")
        return out

    S_FLG = 29
    e(f"s_xor_b32 s{S_FLG}, s{S_ISA}, 1")
    e(f"s_lshl_b32 s{S_FLG}, s{S_FLG}, 3")
    e(f"s_add_u32 s{S_FLG}, s{S_FLG}, s{S_B}")
    e(f"s_lshl_b32 s{S_FLG}, s{S_FLG}, 2")
    e(f"s_add_u32 s{S_FLG}, s{S_FLG}, s{S_W}")
    e(f"s_lshl_b32 s{S_FLG}, s{S_FLG}, 8")
    e(f"s_lshl_b32 s{S_T3}, s{S_P}, 2")
    e(f"s_add_u32 s{S_FLG}, s{S_FLG}, s{S_T3}")
    e(f"s_add_u32 s{S_FLG}, s{S_FLG}, {FLAG_BASE}")
    stamp("pre")
    for n in range(3):
        for l in chunk(n):
            e(l)
        issue(f"C{n}", 11)
    for l in dma_kv("K", 0, goff_imm=0):
        e(l)
    issue("K0", 8)
    stamp("issued")
    e(f"v_and_b32 v{T+2}, 3, v0")
    e(f"v_lshlrev_b32 v{V_FOFF}, 6, v{T+2}")
    e(f"buffer_load_dword v{V_F0}, v{V_FOFF}, {srd(S_WS)}, s{S_FLG} offen sc1")
    e(f"v_lshlrev_b32 v{T+2}, 2, v{T+2}")
    e(f"s_lshl_b32 s{S_T3}, s{S_W}, 4")
    e(f"v_add_u32 v{V_POFF}, s{S_T3}, v{T+2}")
    e(f"s_lshl_b32 s{S_T3}, s{S_B}, 4")
    e(f"s_add_u32 s{S_T3}, s{S_T3}, s{S_P}")
    e(f"s_lshl_b32 s{S_T3}, s{S_T3}, 6")
    e(f"s_add_u32 s{S_T3}, s{S_T3}, {FLAG_BASE}")
    e(f"buffer_load_dword v{V_C0}, v{V_POFF}, {srd(S_WS)}, s{S_T3} offen sc1")
    e(f"s_add_u32 s{S_T3}, s{S_T3}, 8192")
    e(f"buffer_load_dword v{V_C0+1}, v{V_POFF}, {srd(S_WS)}, s{S_T3} offen sc1")
    issue("FR", 3)
    for i in range(4):
        e(f"v_add_u32 v{T+2}, {4*(i&1)}, v{T}")
        e(f"v_lshlrev_b32 v{T+2}, 1, v{T+2}")
        e(f"v_xor_b32 v{T+2}, v{T+2}, v{T+1}")
        e(f"v_lshlrev_b32 v{T+2}, 4, v{T+2}")
        e(f"v_lshl_add_u32 v{V_OFFV+i}, v{T}, 8, v{T+2}")
        e(f"v_lshl_add_u32 v{V_OFFW+i}, v{T}, 10, v{T+2}")
        if i:
            e(f"v_add_u32 v{V_OFFW+i}, {3072*i}, v{V_OFFW+i}")
    e(f"v_xor_b32 v{T+2}, v{T}, v{T+1}")
    e(f"s_lshl_b32 s{S_T3}, s{S_PW}, 3")
    e(f"v_xor_b32 v{T+2}, s{S_T3}, v{T+2}")
    e(f"v_lshlrev_b32 v{T+3}, 8, v{T+1}")
    e(f"v_add_u32 v{T+3}, s{S_RING}, v{T+3}")
    for s in range(4):
        e(f"v_xor_b32 v{T+4}, {4*s}, v{T+2}")
        e(f"v_lshl_add_u32 v{V_KRD+s}, v{T+4}, 4, v{T+3}")
    e(f"v_lshrrev_b32 v{T+2}, 2, v0")
    e(f"v_lshlrev_b32 v{T+3}, 8, v{T+2}")
    e(f"v_add_u32 v{T+3}, s{S_RING}, v{T+3}")
    e(f"v_bfe_u32 v{T+4}, v0, 1, 1")
    e(f"v_lshl_add_u32 v{T+3}, v{T+4}, 4, v{T+3}")
    e(f"v_and_b32 v{T+4}, 1, v0")
    e(f"v_lshl_add_u32 v{T+3}, v{T+4}, 3, v{T+3}")
    e(f"v_and_b32 v{T+2}, 7, v{T+2}")
    e(f"v_lshlrev_b32 v{T+2}, 1, v{T+2}")
    for t in range(8):
        e(f"v_xor_b32 v{T+4}, {2*t}, v{T+2}")
        e(f"v_lshl_add_u32 v{V_WRD+t}, v{T+4}, 4, v{T+3}")
    e(f"v_xor_b32 v{T+2}, s{S_T3}, v{T+2}")
    for t in range(8):
        e(f"v_xor_b32 v{T+4}, {2*t}, v{T+2}")
        e(f"v_lshl_add_u32 v{V_VRD+t}, v{T+4}, 4, v{T+3}")
    e(f"v_lshrrev_b32 v{T+2}, 1, v{T+1}")
    e(f"v_xor_b32 v{T+2}, v{T+2}, v{T}")
    e(f"v_lshlrev_b32 v{T+3}, 7, v{T+1}")
    e(f"v_add_u32 v{T+3}, {MISC0}, v{T+3}")
    e(f"v_lshl_add_u32 v{XR}, v{T+2}, 4, v{T+3}")
    e(f"v_xor_b32 v{T+2}, 4, v{T+2}")
    e(f"v_lshl_add_u32 v{XR+1}, v{T+2}, 4, v{T+3}")
    e(f"v_bfe_u32 v{T+2}, v0, 2, 2")
    e(f"v_bfe_u32 v{T+3}, v0, 4, 1")
    e(f"v_lshl_add_u32 v{T+3}, v{T+3}, 3, v{T+2}")
    e(f"v_lshlrev_b32 v{T+3}, 9, v{T+3}")
    e(f"v_lshrrev_b32 v{T+4}, 5, v0")
    e(f"v_lshl_add_u32 v{T+3}, v{T+4}, 15, v{T+3}")
    e(f"v_and_b32 v{T+4}, 3, v0")
    e(f"s_lshl_b32 s{S_T3}, s{S_W}, 3")
    e(f"v_add_u32 v{T+4}, s{S_T3}, v{T+4}")
    e(f"v_lshlrev_b32 v{T+2}, 2, v{T+2}")
    e(f"v_xor_b32 v{T+4}, v{T+4}, v{T+2}")
    e(f"v_lshl_add_u32 v{WR}, v{T+4}, 4, v{T+3}")
    e(f"v_xor_b32 v{T+4}, 4, v{T+4}")
    e(f"v_lshl_add_u32 v{WR+1}, v{T+4}, 4, v{T+3}")
    e(f"v_add_u32 v{WR+2}, 0x10000, v{WR}")
    e(f"v_add_u32 v{WR+3}, 0x10000, v{WR+1}")
    for i in range(4):
        e(f"v_mov_b32 v{V_ONES+i}, 0x3f803f80")
    for j in range(5):
        e(f"v_mov_b32 v{V_M+j}, 0xff800000")
        e(f"v_mov_b32 v{V_MC+j}, 0xff800000")
        e(f"v_mov_b32 v{V_THR+j}, 0xff800000")

    def kslot(par):
        return 2 * (par ^ 1)

    def k_reads(par, slot=None):
        if slot is None:
            slot = kslot(par)
        out = []
        for kt in range(2):
            for s in range(4):
                d = A_KF + par * 32 + (kt * 4 + s) * 4
                out.append(f"ds_read_b128 {ar(d)}, v{V_KRD+s} offset:{slot*SLOT + kt*4096}")
        return out

    def v_reads(par, slot=None):
        if slot is None:
            slot = kslot(par) + 1
        out = []
        for t in range(8):
            for hf in range(2):
                d = V_VF + par * 32 + t * 4 + hf * 2
                out.append(f"ds_read_b64_tr_b16 v[{d}:{d+1}], v{V_VRD+t} offset:{slot*SLOT + hf*4096}")
        return out

    A_XF = 0
    A_WF = 80
    QACC = V_Q

    def qreads(n):
        out = []
        xb = (n % 3) * 10240
        xf = A_XF + (n & 1) * 40
        wf = A_WF + (n & 1) * 32
        for ks in range(2):
            for tp in range(4):
                sp, par = tp >> 1, tp & 1
                for hf in range(2):
                    off = wslot(n) * SLOT + hf * 2048 + 8 * par
                    d = wf + (ks * 4 + tp) * 4 + hf * 2
                    out.append(f"ds_read_b64_tr_b16 a[{d}:{d+1}], v{WR + ks*2 + sp} offset:{off}")
            for j in range(5):
                d = xf + (ks * 5 + j) * 4
                out.append(f"ds_read_b128 {ar(d)}, v{XR+ks} offset:{xb + j*2048}")
        return out

    def qmfma(n):
        out = []
        xf = A_XF + (n & 1) * 40
        wf = A_WF + (n & 1) * 32
        for ks in range(2):
            for j in range(5):
                for tp in range(4):
                    d = QACC + (tp * 5 + j) * 4
                    cc = "0" if (n == 0 and ks == 0) else vr(d)
                    out.append(f"v_mfma_f32_16x16x32_bf16 {vr(d)}, {ar(wf + (ks*4+tp)*4)}, {ar(xf + (ks*5+j)*4)}, {cc}")
        return out

    def refill(n):
        out = []
        if n == 2:
            out.append((dma_kv("V", 0, goff_imm=0), "V0", 8))
        if n + 3 < 8:
            out.append((chunk(n + 3), f"C{n+3}", 11))
        if n == 5:
            out.append((dma_kv("K", 0, goff_imm=8192), "K1", 8))
            out.append((dma_kv("V", 1, goff_imm=8192), "V1", 8))
        if n == 6:
            out.append((dma_kv("K", 2, goff_imm=2 * 8192), "K2", 8))
        return out

    wait_tag("C0")
    stamp("c0")
    e("s_barrier")
    for l in qreads(0):
        e(l)
    for i in range(32):
        e(f"v_mov_b32 v{V_VF+32+i}, 0")
    for i in range(8):
        e(f"v_mov_b32 v{V_P+i}, 0")
    for i in range(144, 180):
        e(f"v_accvgpr_write_b32 a{i}, 0")
    e("s_waitcnt lgkmcnt(0)")
    e("s_barrier")
    for r, tag, cnt in refill(0):
        for l in r:
            e(l)
        issue(tag, cnt)
    for n in range(8):
        M = qmfma(n)
        if n + 1 < 8:
            wait_tag(f"C{n+1}")
            R = qreads(n + 1)
            if n + 1 == 2:
                wait_tag("K0")
                R = R + k_reads(0, slot=0)
            if n + 1 == 5:
                wait_tag("V0")
                R = R + v_reads(0, slot=0)
            stamp(f"c{n+1}")
            e("s_barrier")
            k = 0
            per = (len(R) + 19) // 20
            for i in range(20):
                e(M[i])
                for _ in range(per):
                    if k < len(R):
                        e(R[k]); k += 1
            assert k == len(R)
            e("s_waitcnt lgkmcnt(0)")
            e("s_barrier")
            rr = refill(n + 1)
            r = [l for x in rr for l in x[0]]
            k = 0
            per = (len(r) + 19) // 20
            for i in range(20, 40):
                e(M[i])
                for _ in range(per):
                    if k < len(r):
                        e(r[k]); k += 1
            assert k == len(r)
            for _, tag, cnt in rr:
                issue(tag, cnt)
        else:
            Z = [f"v_accvgpr_write_b32 a{i}, 0" for i in list(range(0, 40)) + list(range(80, 112))]
            k = 0
            for l in M:
                e(l)
                for _ in range(2):
                    if k < len(Z):
                        e(Z[k]); k += 1
    stamp("qdone")
    for i in list(range(40, 80)) + list(range(112, 144)):
        e(f"v_accvgpr_write_b32 a{i}, 0")
    e(f"v_add_u32 v{T}, s{S_RING}, v{V_L16}")
    e(f"v_add_u32 v{T+1}, s{S_MISC}, v{V_L16}")
    e(f"v_add_u32 v{T+2}, s{S_PRING}, v{V_L16}")
    e(f"v_add_u32 v{T+3}, s{S_PMISC}, v{V_L16}")
    for sp in range(2):
        for j in range(5):
            qd = V_Q + (sp * 5 + j) * 4
            for par in range(2):
                a = QACC + ((2 * sp + par) * 5 + j) * 4
                e(f"v_cvt_pk_bf16_f32 v{qd+2*par}, v{a}, v{a+1}")
                e(f"v_cvt_pk_bf16_f32 v{qd+2*par+1}, v{a+2}, v{a+3}")
            f = sp * 5 + j
            if f < 8:
                e(f"ds_write_b128 v{T}, {vr(V_Q + f*4)} offset:{3*SLOT + f*1024}")
            else:
                e(f"ds_write_b128 v{T+1}, {vr(V_Q + f*4)} offset:{(f-8)*1024}")
    e("s_waitcnt lgkmcnt(0)")
    e("s_barrier")
    for f in range(10):
        if f < 8:
            e(f"ds_read_b128 {vr(V_Q + 40 + f*4)}, v{T+2} offset:{3*SLOT + f*1024}")
        else:
            e(f"ds_read_b128 {vr(V_Q + 40 + f*4)}, v{T+3} offset:{(f-8)*1024}")
    e("s_waitcnt lgkmcnt(0)")
    e("s_barrier")
    for l in dma_kv("V", 3, goff_imm=2 * 8192):
        e(l)
    issue("V2", 8)
    e(f"s_mov_b32 s{S_KOFF}, {3*8192}")
    e(f"s_mov_b32 s{S_VOFF}, {3*8192}")
    e(f"s_mov_b32 s{S_CNT}, 0")
    e(f"s_lshl_b32 s{S_WOB}, s{S_H0}, 17")
    e(f"s_lshl_b32 s{S_T3}, s{S_W}, 8")
    e(f"s_add_u32 s{S_WOB}, s{S_WOB}, s{S_T3}")

    def qk(par, j, sb):
        out = []
        for kt in range(2):
            d = V_S + sb * 8 + kt * 4
            for s in range(4):
                cc = "0" if s == 0 else vr(d)
                out.append(f"v_mfma_f32_16x16x32_bf16 {vr(d)}, {ar(A_KF + par*32 + (kt*4+s)*4)}, {vr(V_Q + (s*5+j)*4)}, {cc}")
        return out

    def pv(par, j, pb):
        out = []
        for t in range(8):
            d = A_O + (t * 5 + j) * 4
            out.append(f"v_mfma_f32_16x16x32_bf16 {ar(d)}, {vr(V_VF + par*32 + t*4)}, {vr(V_P + pb*4)}, {ar(d)}")
        d = A_L + j * 4
        out.append(f"v_mfma_f32_16x16x32_bf16 {ar(d)}, {vr(V_ONES)}, {vr(V_P + pb*4)}, {ar(d)}")
        return out

    slow_blocks = []

    def sm(j, sb, uid):
        s = V_S + sb * 8
        p = V_P + sb * 4
        t0, t1 = V_T, V_T + 1
        G = []
        G.append([f"v_max3_f32 v{t0}, v{s}, v{s+1}, v{s+2}", f"v_max3_f32 v{t1}, v{s+3}, v{s+4}, v{s+5}"])
        G.append([f"v_max3_f32 v{t0}, v{t0}, v{s+6}, v{s+7}", f"v_max_f32 v{t0}, v{t0}, v{t1}"])
        G.append([f"v_cmp_gt_f32 vcc, v{t0}, v{V_THR+j}", f"s_cbranch_vccnz L_slow{uid}", f"L_ret{uid}:"])
        fm = [f"v_fma_f32 v{s+i}, v{s+i}, s{S_C}, -v{V_MC+j}" for i in range(8)]
        ex = [f"v_exp_f32 v{s+i}, v{s+i}" for i in range(8)]
        cv = [f"v_cvt_pk_bf16_f32 v{p+i}, v{s+2*i}, v{s+2*i+1}" for i in range(4)]
        G += [fm[0:2], fm[2:4], [ex[0]], [ex[1]], fm[4:6], [ex[2]], [ex[3]], fm[6:8], [ex[4]], [ex[5], cv[0]], [ex[6]], [ex[7], cv[1]], [cv[2]], [cv[3]]]
        slow_blocks.append((uid, j))
        return G

    stamp("loop")
    for l in qk(0, 0, 0):
        e(l)
    e("s_nop 7")
    g.lab("L_loop")
    for par in range(2):
        for j in range(5):
            u = par * 5 + j
            sb = u & 1
            mq = qk(par, j + 1, sb ^ 1) if j < 4 else qk(par ^ 1, 0, sb ^ 1)
            mp = pv(par, j - 1, sb ^ 1) if j > 0 else pv(par ^ 1, 4, sb ^ 1)
            M = mq + mp
            G = sm(j, sb, u)
            extra = [[] for _ in range(17)]

            def place_dma(d):
                extra[3] += d[0:3]
                extra[5] += [d[3]]
                extra[6] += [d[4]]
                extra[8] += [d[5]]
                extra[9] += d[6:9]
                extra[11] += [d[9]]
                extra[13] += [d[10]]
                extra[15] += [d[11]]

            if j == 1:
                extra[0] = ["s_waitcnt vmcnt(24)"]
                r = k_reads(par ^ 1)
                for i in range(8):
                    extra[3 + i].append(r[i])
            if j == 2:
                extra[0] = ["s_waitcnt lgkmcnt(0)"]
                if par == 1:
                    extra[1] += [f"s_cmp_ge_u32 s{S_CNT}, 6", "s_cbranch_scc1 L_switch", "L_switch_ret:"]
                place_dma(dma_kv("K", kslot(par ^ 1)))
                extra[16] += [f"s_add_u32 s{S_KOFF}, s{S_KOFF}, s{S_STEP}"]
            if j == 3:
                extra[0] = ["s_waitcnt vmcnt(24)"]
                r = v_reads(par ^ 1)
                for i in range(16):
                    extra[1 + i].append(r[i])
            if j == 4:
                extra[0] = ["s_waitcnt lgkmcnt(0)"]
                place_dma(dma_kv("V", kslot(par ^ 1) + 1))
                extra[16] += [f"s_add_u32 s{S_VOFF}, s{S_VOFF}, s{S_STEP}"]
            g.c(f"---- step par={par} j={j}")

            def put(x):
                if x.endswith(":"):
                    g.raw(x)
                else:
                    e(x)

            for i in range(17):
                if i == 0:
                    for x in extra[0]:
                        put(x)
                e(M[i])
                for x in G[i]:
                    put(x)
                if i > 0:
                    for x in extra[i]:
                        put(x)
    e(f"s_add_u32 s{S_CNT}, s{S_CNT}, 1")
    e(f"s_cmp_lt_u32 s{S_CNT}, 8")
    e("s_cbranch_scc1 L_loop")
    e("s_nop 1")
    for l in pv(1, 4, 1):
        e(l)
    stamp("attn")
    e("s_branch L_epi")
    g.lab("L_switch")
    e(f"s_cmp_eq_u32 s{S_CNT}, 7")
    e("s_cbranch_scc1 L_switch2")
    for k in range(3):
        e(f"s_mov_b32 s{S_K+k}, s{S_WO+k}")
        e(f"s_mov_b32 s{S_V+k}, s{S_WO+k}")
    for i in range(4):
        e(f"v_mov_b32 v{V_OFFK+i}, v{V_OFFW+i}")
        e(f"v_mov_b32 v{V_OFFV+i}, v{V_OFFW+i}")
    e(f"s_mov_b32 s{S_KOFF}, s{S_WOB}")
    e(f"s_add_u32 s{S_VOFF}, s{S_WOB}, 32768")
    e(f"s_mov_b32 s{S_HALF}, 16384")
    e(f"s_mov_b32 s{S_STEP}, 65536")
    e("s_branch L_switch_ret")
    g.lab("L_switch2")
    e(f"s_mov_b32 s{S_K+2}, 0")
    e(f"s_mov_b32 s{S_V+2}, 0")
    e(f"s_mov_b32 s{S_DRING}, 0x30000")
    e("s_branch L_switch_ret")
    for uid, j in slow_blocks:
        t0, t1, t2, t3 = V_T, V_T + 1, V_T + 2, V_T + 3
        g.lab(f"L_slow{uid}")
        e(f"v_mov_b32 v{t1}, v{t0}")
        e("s_nop 1")
        e(f"v_permlane32_swap_b32 v{t0}, v{t1}")
        e(f"v_max_f32 v{t0}, v{t0}, v{t1}")
        e(f"v_mov_b32 v{t1}, v{t0}")
        e("s_nop 1")
        e(f"v_permlane16_swap_b32 v{t0}, v{t1}")
        e(f"v_max_f32 v{t0}, v{t0}, v{t1}")
        e(f"v_max_f32 v{V_M+j}, v{V_M+j}, v{t0}")
        e(f"v_mul_f32 v{t1}, s{S_C}, v{V_M+j}")
        e(f"v_sub_f32 v{t2}, v{V_MC+j}, v{t1}")
        e(f"v_exp_f32 v{t2}, v{t2}")
        e(f"v_mov_b32 v{V_MC+j}, v{t1}")
        e(f"v_add_f32 v{V_THR+j}, s{S_THR}, v{V_M+j}")
        regs = [A_O + (t * 5 + j) * 4 + r for t in range(8) for r in range(4)] + [A_L + j * 4 + r for r in range(4)]
        for k in range(0, 36, 2):
            e(f"v_accvgpr_read_b32 v{t1}, a{regs[k]}")
            e(f"v_accvgpr_read_b32 v{t3}, a{regs[k+1]}")
            e(f"v_mul_f32 v{t1}, v{t1}, v{t2}")
            e(f"v_mul_f32 v{t3}, v{t3}, v{t2}")
            e(f"v_accvgpr_write_b32 a{regs[k]}, v{t1}")
            e(f"v_accvgpr_write_b32 a{regs[k+1]}, v{t3}")
        e("s_nop 1")
        e(f"s_branch L_ret{uid}")

    g.lab("L_epi")
    q.clear()
    done[0] = -1
    for c in range(4):
        issue(f"W{c}", 8)
    issue("DROP", 16)
    WFA, WFB = A_KF, A_KF + 32

    def w_reads(slot, dst, tiles=range(8)):
        out = []
        for k, t in enumerate(tiles):
            for hf in range(2):
                d = dst + k * 4 + hf * 2
                out.append(f"ds_read_b64_tr_b16 a[{d}:{d+1}], v{V_WRD+t} offset:{slot*SLOT + hf*4096}")
        return out

    def wo_chunk(c, slot):
        out = []
        for half in range(2):
            out.append(f"s_add_u32 m0, s{S_RING}, {slot*SLOT + half*4096}")
            out.append(f"s_add_u32 s{S_T3}, s{S_WOB}, {c*32768 + half*16384}")
            for i in range(4):
                out.append(f"buffer_load_dwordx4 v{V_OFFW+i}, {srd(S_WO)}, s{S_T3} offen offset:{i*1024} lds")
        return out

    wait_tag("W1")
    for l in w_reads(2, WFA) + w_reads(3, WFB):
        e(l)
    e(f"v_add_u32 v{T}, s{S_RING}, v{V_L16}")
    e(f"v_add_u32 v{T+1}, s{S_PRING}, v{V_L16}")
    e(f"v_add_u32 v{T+2}, s{S_MISC}, v{V_L16}")
    e(f"v_add_u32 v{T+3}, s{S_PMISC}, v{V_L16}")
    e(f"v_lshlrev_b32 v{T+6}, 2, v0")
    e(f"v_add_u32 v{T+4}, s{S_MISC}, v{T+6}")
    e(f"v_add_u32 v{T+5}, s{S_PMISC}, v{T+6}")
    VL = V_S
    for j in range(5):
        e(f"v_accvgpr_read_b32 v{VL+j}, a{A_L + j*4}")
    e("s_waitcnt lgkmcnt(0)")
    for f in range(20):
        if f < 16:
            e(f"ds_write_b128 v{T}, {ar(A_O + 80 + f*4)} offset:{2*SLOT + f*1024}")
        else:
            e(f"ds_write_b128 v{T+2}, {ar(A_O + 80 + f*4)} offset:{(f-16)*1024}")
    for j in range(5):
        e(f"ds_write_b32 v{T+4}, v{V_MC+j} offset:{4096 + j*256}")
        e(f"ds_write_b32 v{T+4}, v{VL+j} offset:{4096 + (5+j)*256}")
    e("s_waitcnt lgkmcnt(0)")
    e("s_barrier")
    RX = V_Q
    for j in range(5):
        e(f"ds_read_b32 v{VL+5+j}, v{T+5} offset:{4096 + j*256}")
        e(f"ds_read_b32 v{VL+10+j}, v{T+5} offset:{4096 + (5+j)*256}")
    for f in range(20):
        if f < 16:
            e(f"ds_read_b128 {vr(RX + f*4)}, v{T+1} offset:{2*SLOT + f*1024}")
        else:
            e(f"ds_read_b128 {vr(RX + f*4)}, v{T+3} offset:{(f-16)*1024}")
    e("s_waitcnt lgkmcnt(15)")
    SO, SP = V_M, V_THR
    for j in range(5):
        e(f"v_max_f32 v{T+8}, v{V_MC+j}, v{VL+5+j}")
        e(f"v_sub_f32 v{T+9}, v{V_MC+j}, v{T+8}")
        e(f"v_sub_f32 v{T+10}, v{VL+5+j}, v{T+8}")
        e(f"v_exp_f32 v{T+9}, v{T+9}")
        e(f"v_exp_f32 v{T+10}, v{T+10}")
        e("s_nop 0")
        e(f"v_mul_f32 v{T+8}, v{T+9}, v{VL+j}")
        e(f"v_fma_f32 v{T+8}, v{T+10}, v{VL+10+j}, v{T+8}")
        e(f"v_rcp_f32 v{T+8}, v{T+8}")
        e("s_nop 0")
        e(f"v_mul_f32 v{SO+j}, v{T+9}, v{T+8}")
        e(f"v_mul_f32 v{SP+j}, v{T+10}, v{T+8}")
    e("s_waitcnt lgkmcnt(0)")
    OF = V_VF
    for tau in range(4):
        for j in range(5):
            f = tau * 5 + j
            tt = T + 8 + (f & 1) * 4
            for r in range(4):
                e(f"v_accvgpr_read_b32 v{tt+r}, a{A_O + f*4 + r}")
            for r in range(4):
                e(f"v_mul_f32 v{RX + f*4 + r}, v{RX + f*4 + r}, v{SP+j}")
            for r in range(4):
                e(f"v_fma_f32 v{RX + f*4 + r}, v{tt+r}, v{SO+j}, v{RX + f*4 + r}")
            od = OF + ((tau >> 1) * 5 + j) * 4 + (tau & 1) * 2
            e(f"v_cvt_pk_bf16_f32 v{od}, v{RX+f*4}, v{RX+f*4+1}")
            e(f"v_cvt_pk_bf16_f32 v{od+1}, v{RX+f*4+2}, v{RX+f*4+3}")
    for f in range(10):
        e(f"ds_write_b128 v{T+1}, {vr(OF + f*4)} offset:{2*SLOT + f*1024}")
    e(f"v_add_u32 v{T+6}, 0x10000, v{V_L16}")
    e("s_waitcnt lgkmcnt(0)")
    e("s_barrier")
    A_OF = 0
    for wp in range(4):
        rg = wp ^ 1
        va = V_L16 if rg < 2 else T + 6
        for f in range(10):
            e(f"ds_read_b128 {ar(A_OF + (wp*10+f)*4)}, v{va} offset:{(rg & 1)*RING + 2*SLOT + f*1024}")
    e("s_waitcnt lgkmcnt(0)")
    e("s_barrier")
    stamp("comb")
    YACC = 40
    PK = 200

    def ymfma(c, wf, tiles=range(8), first=False):
        out = []
        for k, t in enumerate(tiles):
            for j in range(5):
                d = YACC + (t * 5 + j) * 4
                cc = "0" if first else vr(d)
                out.append(f"v_mfma_f32_16x16x32_bf16 {vr(d)}, {ar(wf + k*4)}, {ar(A_OF + (c*5+j)*4)}, {cc}")
        return out

    def interleave(M, X, start=0):
        k = 0
        per = max(1, (len(X) + len(M) - start - 1) // max(1, (len(M) - start)))
        for i, m in enumerate(M):
            e(m)
            if i >= start:
                for _ in range(per):
                    if k < len(X):
                        e(X[k]); k += 1
        while k < len(X):
            e(X[k]); k += 1

    S_PB = S_T2
    e(f"s_xor_b32 s{S_PB}, s{S_ISA}, 1")
    e(f"s_lshl_b32 s{S_PB}, s{S_PB}, 3")
    e(f"s_add_u32 s{S_PB}, s{S_PB}, s{S_B}")
    e(f"s_lshl_b32 s{S_PB}, s{S_PB}, 4")
    e(f"s_add_u32 s{S_PB}, s{S_PB}, s{S_P}")
    e(f"s_mul_i32 s{S_PB}, s{S_PB}, {PART}")
    e(f"s_mul_i32 s{S_T3}, s{S_W}, 20480")
    e(f"s_add_u32 s{S_PB}, s{S_PB}, s{S_T3}")
    interleave(ymfma(0, WFA, first=True), wo_chunk(4, 2) + wo_chunk(5, 3))
    issue("W4", 8)
    issue("W5", 8)
    wait_tag("W3")
    interleave(ymfma(1, WFB), w_reads(0, WFA))
    e("s_waitcnt lgkmcnt(0)")
    interleave(ymfma(2, WFA), w_reads(1, WFB) + wo_chunk(6, 0))
    issue("W6", 8)
    e("s_waitcnt lgkmcnt(0)")

    def u_reads(u, dst):
        out = []
        for cc in range(4):
            out += w_reads((2, 3, 0, 1)[cc], dst + cc * 8, tiles=(2 * u, 2 * u + 1))
        return out

    def u_mfma(u, src):
        out = []
        for cc in range(4):
            out += ymfma(4 + cc, src + cc * 8, tiles=(2 * u, 2 * u + 1))
        return out

    def u_store(u):
        out = []
        for j in range(5):
            pk = PK + (j & 1) * 4
            for par in range(2):
                a = YACC + ((2 * u + par) * 5 + j) * 4
                out.append(f"v_cvt_pk_bf16_f32 v{pk+2*par}, v{a}, v{a+1}")
                out.append(f"v_cvt_pk_bf16_f32 v{pk+2*par+1}, v{a+2}, v{a+3}")
            out.append(f"s_add_u32 s{S_T3}, s{S_PB}, {(u*5+j)*1024}")
            out.append(f"buffer_store_dwordx4 {vr(pk)}, v{V_L16}, {srd(S_WS)}, s{S_T3} offen {st_flag}")
        return out

    def flag(u):
        return [f"s_mov_b64 exec, {1 << u}",
                f"buffer_store_dword v{V_F0}, v{V_FOFF}, {srd(S_WS)}, s{S_FLG} offen sc1",
                "s_mov_b64 exec, -1"]

    interleave(ymfma(3, WFB), wo_chunk(7, 1))
    issue("W7", 8)
    e(f"v_add_u32 v{V_F0}, 1, v{V_F0}")
    wait_tag("W7")
    for l in u_reads(0, WFA):
        e(l)
    for u in range(4):
        src = WFA if u % 2 == 0 else WFB
        nxt = WFB if u % 2 == 0 else WFA
        e("s_waitcnt lgkmcnt(0)")
        X = []
        if u + 1 < 4:
            X += u_reads(u + 1, nxt)
        if u >= 1:
            X = X[:8] + u_store(u - 1) + X[8:]
        interleave(u_mfma(u, src), X, start=2)
        if u >= 1:
            issue(f"S{u-1}", 5)
        if u >= 2:
            wait_tag(f"S{u-2}")
            for l in flag(u - 2):
                e(l)
            issue(f"F{u-2}", 1)
    e("s_nop 7")
    for l in u_store(3):
        e(l)
    issue("S3", 5)
    wait_tag("S2")
    for l in flag(2):
        e(l)
    issue("F2", 1)
    wait_tag("S3")
    for l in flag(3):
        e(l)
    issue("F3", 1)
    stamp("prod")
    e("s_barrier")
    e(f"s_cmp_lg_u32 s{S_W}, 0")
    e("s_cbranch_scc1 L_nomark")
    e(f"v_mov_b32 v{T+1}, 1")
    e(f"v_mov_b32 v{T+2}, s2")
    e("s_mov_b64 exec, 1")
    e(f"buffer_store_byte v{T+1}, v{T+2}, {srd(S_DBG)}, 0 offen sc1")
    e("s_mov_b64 exec, -1")
    g.lab("L_nomark")
    e(f"s_cmp_eq_u32 s{S_ISA}, 0")
    e("s_cbranch_scc1 L_fin")
    e(f"v_lshrrev_b32 v{T+9}, 2, v{V_POFF}")
    e(f"v_and_b32 v{T+10}, 1, v{T+9}")
    e(f"v_lshrrev_b32 v{T+9}, 1, v{T+9}")
    e(f"v_lshl_add_u32 v{T+9}, v{T+10}, 4, v{T+9}")
    e(f"s_lshl_b32 s{S_T3}, s{S_B}, 5")
    e(f"v_add_u32 v{T+9}, s{S_T3}, v{T+9}")
    S_BR = S_CNT
    e(f"s_mov_b32 s{S_BR}, 0")
    e("s_mov_b32 s4, 0x00003f80")
    e("s_mov_b32 s5, 0x3f800000")
    e(f"v_and_b32 v{T+5}, 15, v0")
    e(f"v_lshrrev_b32 v{T+6}, 4, v0")
    e(f"v_lshlrev_b32 v{T+6}, 3, v{T+6}")
    e(f"v_lshl_add_u32 v{T+5}, v{T+5}, 11, v{T+6}")
    e(f"s_mul_i32 s6, s{S_B}, 163840")
    e(f"s_lshl_b32 s{S_T3}, s{S_P}, 6")
    e(f"s_add_u32 s6, s6, s{S_T3}")
    e(f"s_mul_i32 s7, s{S_W}, 10240")
    e(f"v_add_u32 v{T+7}, s7, v{V_L16}")
    e(f"s_lshl_b32 s7, s{S_W}, 11")
    e(f"v_add_u32 v{T+8}, s7, v{V_L16}")
    g.lab("L_cons")
    e(f"s_lshl_b32 s8, s{S_BR}, 3")
    e(f"s_add_u32 s8, s8, s{S_B}")
    e("s_lshl_b32 s8, s8, 4")
    e(f"s_add_u32 s9, s8, s{S_P}")
    e("s_lshl_b32 s9, s9, 6")
    e(f"s_add_u32 s9, s9, {FLAG_BASE}")
    e(f"s_lshl_b32 s10, s{S_W}, 2")
    e("s_add_u32 s10, s10, s8")
    e(f"s_mul_i32 s10, s10, {PART}")
    e(f"s_mul_i32 s11, s{S_P}, 5120")
    e("s_add_u32 s10, s10, s11")
    e(f"s_xor_b32 s13, s{S_BR}, 1")
    e("s_lshl_b32 s13, s13, 3")
    e("s_mov_b32 s14, 0")
    g.lab("L_poll")
    e(f"buffer_load_dword v{T+3}, v{V_POFF}, {srd(S_WS)}, s9 offen sc1")
    e("s_waitcnt vmcnt(0)")
    e(f"v_cmp_eq_u32 vcc, v{V_C0}, v{T+3}")
    e("s_cbranch_vccz L_go")
    if poll_sleep:
        e(f"s_sleep {poll_sleep}")
    e("s_add_u32 s14, s14, 1")
    e("s_and_b32 s15, s14, 31")
    e("s_cbranch_scc1 L_poll")
    e(f"buffer_load_ubyte v{T+3}, v{T+9}, {srd(S_DBG)}, s13 offen sc1")
    e("s_waitcnt vmcnt(0)")
    e(f"v_cmp_eq_u32 vcc, 0, v{T+3}")
    e("s_cbranch_vccnz L_poll")
    g.lab("L_go")
    stamp("poll")
    LD = 64
    for y in range(4):
        e(f"s_add_u32 s11, s10, {y*PART}")
        for j in range(5):
            if j < 4:
                e(f"buffer_load_dwordx4 {vr(LD + (y*5+j)*4)}, v{V_L16}, {srd(S_WS)}, s11 offen offset:{j*1024} sc1")
            else:
                e(f"s_add_u32 s11, s11, 4096")
                e(f"buffer_load_dwordx4 {vr(LD + (y*5+j)*4)}, v{V_L16}, {srd(S_WS)}, s11 offen sc1")
    AC = 16
    for i in range(40):
        e(f"v_mov_b32 v{AC+i}, 0")
    for y in range(4):
        e(f"s_waitcnt vmcnt({15 - 5*y})")
        for j in range(5):
            for r in range(4):
                x = LD + (y * 5 + j) * 4 + r
                e(f"v_dot2c_f32_bf16 v{AC + j*8 + 2*r}, s4, v{x}")
                e(f"v_dot2c_f32_bf16 v{AC + j*8 + 2*r + 1}, s5, v{x}")
    e("s_nop 2")
    for j in range(5):
        for h2 in range(2):
            e(f"ds_write_b128 v{T+7}, {vr(AC + j*8 + h2*4)} offset:{(j*2+h2)*1024}")
    e("s_waitcnt lgkmcnt(0)")
    e("s_barrier")
    e(f"s_lshl_b32 s11, s{S_BR}, 10")
    e("s_add_u32 s11, s11, s6")
    e(f"s_lshl_b32 s12, s{S_W}, 15")
    e("s_add_u32 s12, s12, s11")

    def final_block(va, extra_off, soff):
        k = 0
        for w in range(4):
            for h2 in range(2):
                e(f"ds_read_b128 {vr(LD + k*4)}, v{va} offset:{w*10240 + h2*1024 + extra_off}")
                k += 1
        e("s_waitcnt lgkmcnt(0)")
        for i in range(8):
            h2, r = i >> 2, i & 3
            srcs = [LD + (kk * 2 + h2) * 4 + r for kk in range(4)]
            e(f"v_add_f32 v{AC+i}, v{srcs[0]}, v{srcs[1]}")
            e(f"v_add_f32 v{AC+8+i}, v{srcs[2]}, v{srcs[3]}")
        for i in range(8):
            e(f"v_add_f32 v{AC+i}, v{AC+i}, v{AC+8+i}")
        for i in range(4):
            e(f"v_cvt_pk_bf16_f32 v{AC+16+i}, v{AC+2*i}, v{AC+2*i+1}")
        e(f"buffer_store_dwordx2 v[{AC+16}:{AC+17}], v{T+5}, {srd(S_OUT)}, {soff} offen")
        e(f"buffer_store_dwordx2 v[{AC+18}:{AC+19}], v{T+5}, {srd(S_OUT)}, {soff} offen offset:32")

    final_block(T + 8, 0, "s12")
    e(f"s_cmp_lg_u32 s{S_W}, 0")
    e("s_cbranch_scc1 L_skip4")
    e(f"s_add_u32 s12, s11, {4*32768}")
    final_block(T + 8, 4 * 2048, "s12")
    g.lab("L_skip4")
    e("s_barrier")
    e(f"v_mov_b32 v{V_C0}, v{V_C0+1}")
    e(f"s_add_u32 s{S_BR}, s{S_BR}, 1")
    e(f"s_cmp_lt_u32 s{S_BR}, 2")
    e("s_cbranch_scc1 L_cons")
    g.lab("L_fin")
    if stamps:
        e("s_waitcnt vmcnt(0)")
        stamp("end")
        n = len(stamps)
        e(f"s_lshl_b32 s{S_T1}, s2, 2")
        e(f"s_add_u32 s{S_T1}, s{S_T1}, s{S_W}")
        e(f"s_mul_i32 s{S_T1}, s{S_T1}, {n*8}")
        e(f"s_add_u32 s{S_T1}, s{S_T1}, {WS_BYTES - 256*4*n*8}")
        e("s_waitcnt lgkmcnt(0)")
        e("v_mov_b32 v8, 0")
        e("s_mov_b64 exec, 1")
        for k in range(n):
            e(f"v_mov_b32 v4, s{S_STAMP+2*k}")
            e(f"v_mov_b32 v5, s{S_STAMP+2*k+1}")
            e(f"buffer_store_dwordx2 v[4:5], v8, {srd(S_WS)}, s{S_T1} offen offset:{k*8}")
            e("s_nop 1")
    g.lab("L_end")
    e("s_endpgm")
    g.raw('.section .rodata,"a"')
    g.raw(".p2align 6")
    g.raw(f".amdhsa_kernel {NAME}_kernel")
    g.raw("  .amdhsa_next_free_vgpr 512")
    g.raw("  .amdhsa_next_free_sgpr 102")
    g.raw("  .amdhsa_accum_offset 256")
    g.raw("  .amdhsa_group_segment_fixed_size 0")
    g.raw("  .amdhsa_kernarg_size 104")
    g.raw("  .amdhsa_user_sgpr_count 2")
    g.raw("  .amdhsa_user_sgpr_kernarg_segment_ptr 1")
    g.raw("  .amdhsa_system_sgpr_workgroup_id_x 1")
    g.raw("  .amdhsa_float_denorm_mode_32 3")
    g.raw(".end_amdhsa_kernel")
    return g.text()


STAMPS = ["start", "c0", "qdone", "loop", "attn", "comb", "prod", "end"]
if __name__ == "__main__":
    t = gen()
    check(t)
    open("v3.s", "w").write(t)
    open("v3_nt.s", "w").write(gen(nt_kv="nt"))
    open("v3_st.s", "w").write(gen(stamps=STAMPS))
    open("v3_nt_st.s", "w").write(gen(nt_kv="nt", stamps=STAMPS))
    open("v3_stq.s", "w").write(gen(stamps=["start", "pre", "issued", "c0", "c1", "c3", "c5", "end"]))
```

```python
import sys, struct, math
from asmlib import Asm, check

NAME = "concat_heads__gqa_block_cached__mha_block_cached__near_ridge"
HDR = open("cdna_kernels/" + NAME + ".s.ref").read().split("; Override launch")[0]


def f2u(x):
    return struct.unpack("<I", struct.pack("<f", x))[0]


SCALE_C = math.log2(math.e) / math.sqrt(128.0)
THR_T = 8.0
WS_BYTES = 268435456
PART = 81920
FLAG_BASE = 32 * 1024 * 1024
XF_BASE = FLAG_BASE + 65536

S_X, S_WQ, S_K, S_V, S_WO, S_WS, S_OUT, S_DBG = 32, 36, 40, 44, 48, 52, 56, 60
S_W, S_PW, S_ISA, S_B, S_H0, S_RING, S_MISC, S_CNT, S_KOFF = 64, 65, 66, 67, 68, 69, 70, 72, 73
S_T0, S_T1, S_T2, S_T3 = 74, 75, 76, 77
S_PRING, S_PMISC, S_THRESH, S_DMIN = 78, 79, 80, 81
S_C2 = 82
S_DRING, S_P = 30, 31
S_ROT, S_X3, S_WOB, S_FLG = 3, 100, 101, 29
S_STAMP = 84
S_PK, S_PV = 4, 8
S_HOFF, S_KDST, S_VDST, S_PFO, S_VOFF, S_KB, S_VB, S_XFO = 12, 13, 14, 15, 71, 16, 17, 18

V_OFFK = 1
V_OFFV = 5
V_L16 = 7
V_KRD = 8
V_VRD = 12
V_ONES = 20
V_OFFW = 24
V_WRD = 28
V_F0, V_FOFF, V_POFF = 36, 37, 38
V_Q = 40
V_S = 120
V_P = 136
V_VF = 144
V_NM = 208
V_T = 228
V_C0 = 244
V_XF = 246
A_O = 0
A_L = 160
A_KF = 180

RING = 32768
SLOT = 8192
MISC0 = 131072
NEG_INF = 0xff800000


def srd(n):
    return f"s[{n}:{n+3}]"


def vr(b, n=4):
    return f"v[{b}:{b+n-1}]"


def ar(b, n=4):
    return f"a[{b}:{b+n-1}]"


def gen(nt_x="nt", nt_y="nt", stamps=None, poll_sleep=1, warm=True, pf=0, pf_start=12, spread=True, defer=True, defer_max=400):
    g = Asm()
    e = g.e
    g.raw(HDR.rstrip("\n"))
    g.raw("; @launch grid=(256,1,1) block=(256,1,1) lds=163840")
    g.raw('.amdgcn_target "amdgcn-amd-amdhsa--gfx950"')
    g.raw(".text")
    g.raw(f".globl {NAME}_kernel")
    g.raw(".p2align 8")
    g.raw(f".type {NAME}_kernel,@function")
    g.lab(f"{NAME}_kernel")
    stamps = stamps or []

    def stamp(name):
        if name in stamps:
            k = stamps.index(name)
            e(f"s_memrealtime s[{S_STAMP+2*k}:{S_STAMP+2*k+1}]")

    def put(x):
        if x.endswith(":"):
            g.raw(x)
        else:
            e(x)

    def interleave(M, X, start=0, end=None):
        n = len(M) if end is None else end
        k = 0
        slots = max(1, n - start)
        for i, m in enumerate(M):
            put(m)
            if start <= i < n:
                tgt = (len(X) * (i - start + 1) + slots - 1) // slots
                while k < min(tgt, len(X)):
                    put(X[k]); k += 1
        while k < len(X):
            put(X[k]); k += 1

    T = V_T
    e("s_cmp_ge_u32 s2, 256")
    e("s_cbranch_scc1 L_end")
    stamp("start")
    e("s_load_dwordx16 s[4:19], s[0:1], 0")
    e("s_load_dwordx8 s[20:27], s[0:1], 64")
    e("s_load_dwordx2 s[28:29], s[0:1], 96")
    e("v_lshrrev_b32 v1, 6, v0")
    e("v_and_b32 v0, 63, v0")
    e(f"v_readfirstlane_b32 s{S_W}, v1")
    e(f"s_and_b32 s{S_T0}, s2, 7")
    e(f"s_lshr_b32 s{S_T1}, s2, 3")
    e(f"s_and_b32 s{S_ISA}, s{S_T1}, 1")
    e(f"s_lshr_b32 s{S_B}, s{S_T1}, 2")
    e(f"s_bfe_u32 s{S_T1}, s{S_T1}, 0x10001")
    e(f"s_lshl_b32 s{S_P}, s{S_T0}, 1")
    e(f"s_add_u32 s{S_P}, s{S_P}, s{S_T1}")
    e(f"s_lshl_b32 s{S_H0}, s{S_P}, 1")
    e(f"s_lshl_b32 s{S_ROT}, s{S_T1}, 2")
    e(f"s_add_u32 s{S_ROT}, s{S_ROT}, s{S_B}")
    e(f"s_and_b32 s{S_PW}, s{S_W}, 1")
    e(f"s_lshl_b32 s{S_RING}, s{S_W}, 15")
    e(f"s_mov_b32 s{S_DRING}, s{S_RING}")
    e(f"s_xor_b32 s{S_PRING}, s{S_RING}, {RING}")
    e(f"s_lshl_b32 s{S_MISC}, s{S_W}, 13")
    e(f"s_add_u32 s{S_MISC}, s{S_MISC}, {MISC0}")
    e(f"s_xor_b32 s{S_PMISC}, s{S_MISC}, 8192")
    e(f"s_lshl_b32 s{S_T1}, s{S_B}, 5")
    e(f"s_add_u32 s{S_T1}, s{S_T1}, s{S_H0}")
    e(f"s_lshr_b32 s{S_T2}, s{S_W}, 1")
    e(f"s_add_u32 s{S_T1}, s{S_T1}, s{S_T2}")
    e(f"s_lshl_b32 s{S_T2}, s{S_B}, 3")
    e(f"s_add_u32 s{S_T2}, s{S_T2}, s{S_T0}")
    e(f"s_cmp_eq_u32 s{S_ISA}, 1")
    e(f"s_cselect_b32 s{S_T1}, s{S_T2}, s{S_T1}")
    e(f"s_lshl_b32 s{S_T1}, s{S_T1}, 18")
    e(f"s_lshl_b32 s{S_T2}, s{S_PW}, 17")
    e(f"s_add_u32 s{S_T1}, s{S_T1}, s{S_T2}")
    e(f"s_mul_i32 s{S_T2}, s{S_B}, 81920")
    e(f"s_cmp_lt_u32 s{S_W}, 2")
    e(f"s_cselect_b32 s{S_X3}, 8, 4")
    e(f"s_add_u32 s{S_X3}, s{S_X3}, s{S_W}")
    OFFWQ, OFFX, XR, WR = V_S, V_S + 2, V_S + 3, V_S + 5
    e(f"v_lshrrev_b32 v{T}, 4, v0")
    e(f"v_and_b32 v{T+1}, 15, v0")
    e(f"v_lshlrev_b32 v{V_L16}, 4, v0")
    e(f"v_lshrrev_b32 v{T+2}, 5, v0")
    e(f"v_and_b32 v{T+3}, 31, v0")
    for i in range(2):
        e(f"v_add_u32 v{T+4}, {2*i}, v{T+2}")
        e(f"v_lshlrev_b32 v{T+4}, 2, v{T+4}")
        e(f"v_xor_b32 v{T+4}, v{T+4}, v{T+3}")
        e(f"v_lshlrev_b32 v{T+4}, 4, v{T+4}")
        e(f"v_lshl_add_u32 v{OFFWQ+i}, v{T+2}, 13, v{T+4}")
    e(f"s_lshl_b32 s{S_T3}, s{S_PW}, 2")
    e(f"v_add_u32 v{T+4}, s{S_T3}, v{T}")
    e(f"v_and_b32 v{T+5}, 7, v0")
    e(f"v_xor_b32 v{T+4}, v{T+4}, v{T+5}")
    e(f"v_lshlrev_b32 v{T+4}, 4, v{T+4}")
    e(f"v_lshrrev_b32 v{T+5}, 3, v0")
    e(f"v_lshl_add_u32 v{OFFX}, v{T+5}, 10, v{T+4}")
    for i in range(4):
        e(f"v_add_u32 v{T+2}, {4*i}, v{T}")
        e(f"v_xor_b32 v{T+2}, v{T+2}, v{T+1}")
        e(f"v_lshlrev_b32 v{T+2}, 4, v{T+2}")
        e(f"v_lshl_add_u32 v{V_OFFK+i}, v{T}, 8, v{T+2}")
    for i in range(2):
        e(f"v_add_u32 v{T+2}, {4*i}, v{T}")
        e(f"v_lshlrev_b32 v{T+2}, 1, v{T+2}")
        e(f"v_xor_b32 v{T+2}, v{T+2}, v{T+1}")
        e(f"v_lshlrev_b32 v{T+2}, 4, v{T+2}")
        e(f"v_lshl_add_u32 v{V_OFFV+i}, v{T}, 8, v{T+2}")
    e("s_waitcnt lgkmcnt(0)")
    e(f"s_cmp_eq_u32 s{S_ISA}, 1")
    e(f"s_cselect_b64 s[{S_X}:{S_X+1}], s[4:5], s[14:15]")
    e(f"s_cselect_b64 s[{S_WQ}:{S_WQ+1}], s[10:11], s[20:21]")
    e(f"s_cselect_b64 s[{S_K}:{S_K+1}], s[6:7], s[16:17]")
    e(f"s_cselect_b64 s[{S_V}:{S_V+1}], s[8:9], s[18:19]")
    e(f"s_cselect_b64 s[{S_WO}:{S_WO+1}], s[12:13], s[22:23]")
    e(f"s_add_u32 s{S_X}, s{S_X}, s{S_T2}")
    e(f"s_addc_u32 s{S_X+1}, s{S_X+1}, 0")
    e(f"s_add_u32 s{S_K}, s{S_K}, s{S_T1}")
    e(f"s_addc_u32 s{S_K+1}, s{S_K+1}, 0")
    e(f"s_add_u32 s{S_V}, s{S_V}, s{S_T1}")
    e(f"s_addc_u32 s{S_V+1}, s{S_V+1}, 0")
    e(f"s_mov_b32 s{S_X+2}, 81920")
    e(f"s_mov_b32 s{S_WQ+2}, 4194304")
    e(f"s_mov_b32 s{S_K+2}, 131072")
    e(f"s_mov_b32 s{S_V+2}, 131072")
    e(f"s_mov_b32 s{S_WO+2}, 4194304")
    e(f"s_mov_b32 s{S_WS}, s28")
    e(f"s_mov_b32 s{S_WS+1}, s29")
    e(f"s_mov_b32 s{S_WS+2}, {WS_BYTES}")
    e(f"s_mov_b32 s{S_OUT}, s24")
    e(f"s_mov_b32 s{S_OUT+1}, s25")
    e(f"s_mov_b32 s{S_OUT+2}, 1310720")
    e(f"s_mov_b32 s{S_DBG}, s26")
    e(f"s_mov_b32 s{S_DBG+1}, s27")
    e(f"s_mov_b32 s{S_DBG+2}, 256")
    for s_ in (S_X, S_WQ, S_K, S_V, S_WO, S_WS, S_OUT, S_DBG):
        e(f"s_mov_b32 s{s_+3}, 0x20000")

    e(f"s_lshl_b32 s{S_T3}, s{S_B}, 5")
    e(f"s_add_u32 s{S_T3}, s{S_T3}, s{S_H0}")
    e(f"s_lshl_b32 s{S_T3}, s{S_T3}, 18")
    e(f"s_add_u32 s{S_PK}, s16, s{S_T3}")
    e(f"s_addc_u32 s{S_PK+1}, s17, 0")
    e(f"s_add_u32 s{S_PV}, s18, s{S_T3}")
    e(f"s_addc_u32 s{S_PV+1}, s19, 0")
    e(f"s_mov_b32 s{S_PK+2}, 524288")
    e(f"s_mov_b32 s{S_PV+2}, 524288")
    e(f"s_mov_b32 s{S_PK+3}, 0x20000")
    e(f"s_mov_b32 s{S_PV+3}, 0x20000")
    e(f"s_lshr_b32 s{S_HOFF}, s{S_W}, 1")
    e(f"s_lshl_b32 s{S_HOFF}, s{S_HOFF}, 12")
    e(f"s_lshl_b32 s{S_KB}, s{S_PW}, 15")
    e(f"s_add_u32 s{S_VB}, s{S_KB}, 0x10000")
    e(f"s_add_u32 s{S_KDST}, s{S_KB}, s{S_HOFF}")
    e(f"s_add_u32 s{S_VDST}, s{S_VB}, s{S_HOFF}")
    e(f"s_lshl_b32 s{S_PFO}, s{S_W}, 17")
    e(f"s_add_u32 s{S_PFO}, s{S_PFO}, {pf_start*8192}")
    e(f"s_cmp_eq_u32 s{S_ISA}, 1")
    e(f"s_cselect_b32 s{S_KB}, s{S_KB}, s{S_RING}")
    e(f"s_cselect_b32 s{S_VB}, s{S_VB}, s{S_RING}")

    q = []
    done = [-1]
    rolecnt = [0]

    def by_role(xl, yl):
        nx = sum(1 for l in xl if l.startswith("buffer_"))
        ny = sum(1 for l in yl if l.startswith("buffer_"))
        assert nx == ny, (nx, ny)
        k = rolecnt[0]
        rolecnt[0] += 1
        return ([f"s_cmp_eq_u32 s{S_ISA}, 1", f"s_cbranch_scc1 L_ry{k}"] + xl + [f"s_branch L_re{k}", f"L_ry{k}:"] + yl + [f"L_re{k}:"])

    def dma_half(which, slot, goff_imm=None, nt=""):
        s_ = S_K if which == "K" else S_V
        dst = S_KDST if which == "K" else S_VDST
        so = S_KOFF if which == "K" else S_VOFF
        out = [f"s_add_u32 m0, s{dst}, {slot*SLOT}"]
        if goff_imm is not None:
            out.append(f"s_add_u32 s{S_T3}, s{S_HOFF}, {goff_imm}")
            so = S_T3
        else:
            out.append("s_nop 0")
        for i in range(4):
            vo = V_OFFK + i if which == "K" else V_OFFV + (i & 1)
            out.append(f"buffer_load_dwordx4 v{vo}, {srd(s_)}, s{so} offen offset:{i*1024} {nt} lds")
        return out

    def warm_loads(cs):
        out = [f"s_lshl_b32 s{S_CNT}, s{S_B}, 12", f"s_add_u32 s{S_CNT}, s{S_CNT}, s{S_WOB}"]
        for c in cs:
            out.append(f"s_add_u32 s{S_T3}, s{S_CNT}, {c*32768}")
            out.append(f"buffer_load_dwordx4 v[248:251], v{V_OFFW}, {srd(S_WO)}, s{S_T3} offen")
        return out

    def helper(n):
        out = []
        for i in range(n):
            out.append(f"buffer_load_dwordx4 v[248:251], v{V_L16}, {srd(S_PK)}, s{S_PFO} offen offset:{i*1024}")
            out.append(f"buffer_load_dwordx4 v[252:255], v{V_L16}, {srd(S_PV)}, s{S_PFO} offen offset:{i*1024}")
        out.append(f"s_add_u32 s{S_PFO}, s{S_PFO}, {n*1024}")
        return out

    def issue(tag, n=1):
        q.extend([tag] * n)

    def wait_str(tag):
        last = max(i for i, t in enumerate(q) if t == tag)
        n = len(q) - 1 - last
        if last <= done[0]:
            return None
        done[0] = last
        assert n <= 63, n
        return f"s_waitcnt vmcnt({n})"

    def wait_tag(tag):
        w = wait_str(tag)
        if w:
            e(w)

    def dma_kv(which, slot, goff_imm=None, nt=""):
        s_ = S_K if which == "K" else S_V
        out = []
        for half in range(2):
            out.append(f"s_add_u32 m0, s{S_DRING}, {slot*SLOT + half*4096}")
            if goff_imm is not None:
                out.append(f"s_mov_b32 s{S_T3}, {goff_imm + half*4096}")
            else:
                out.append(f"s_add_u32 s{S_T3}, s{S_KOFF}, {half*4096}")
            for i in range(4):
                vo = V_OFFK + i if which == "K" else V_OFFV + (i & 1)
                out.append(f"buffer_load_dwordx4 v{vo}, {srd(s_)}, s{S_T3} offen offset:{i*1024} {nt} lds")
        return out

    def wo_chunk(c, base_sreg, off):
        out = []
        for half in range(2):
            out.append(f"s_add_u32 m0, s{base_sreg}, {off + half*4096}")
            out.append(f"s_add_u32 s{S_T3}, s{S_WOB}, {c*32768 + half*16384}")
            for i in range(4):
                out.append(f"buffer_load_dwordx4 v{V_OFFW+i}, {srd(S_WO)}, s{S_T3} offen offset:{i*1024} lds")
        return out

    S_WC = S_T0
    e(f"s_lshl_b32 s{S_WC}, s{S_W}, 17")
    e(f"s_lshl_b32 s{S_T1}, s{S_H0}, 8")
    e(f"s_add_u32 s{S_WC}, s{S_WC}, s{S_T1}")
    S_KC = S_T1
    S_XW = S_T2
    e(f"s_lshl_b32 s{S_XW}, s{S_W}, 13")

    def wslot(n):
        return 1 + ((n + 1) % 3)

    def chunk(n):
        out = []
        out.append(f"s_add_u32 s{S_KC}, s{S_ROT}, {n}")
        out.append(f"s_and_b32 s{S_KC}, s{S_KC}, 7")
        out.append(f"s_lshl_b32 s{S_CNT}, s{S_KC}, 19")
        out.append(f"s_add_u32 s{S_CNT}, s{S_CNT}, s{S_WC}")
        for i in range(8):
            out.append(f"s_add_u32 m0, s{S_RING}, {wslot(n)*SLOT + i*1024}")
            out.append(f"s_add_u32 s{S_T3}, s{S_CNT}, {i*16384}")
            out.append(f"buffer_load_dwordx4 v{OFFWQ + (i&1)}, {srd(S_WQ)}, s{S_T3} offen lds")
        out.append(f"s_lshl_b32 s{S_KC}, s{S_KC}, 7")
        xb = MISC0 + (n % 3) * 10240
        for k in range(3):
            if k < 2:
                out.append(f"s_lshl_b32 s{S_CNT}, s{S_W}, 10")
                out.append(f"s_add_u32 m0, s{S_CNT}, {xb + k*4096}")
                out.append(f"s_add_u32 s{S_T3}, s{S_XW}, {k*32768}")
            else:
                out.append(f"s_lshl_b32 s{S_CNT}, s{S_X3}, 10")
                out.append(f"s_add_u32 m0, s{S_CNT}, {xb}")
                out.append(f"s_lshl_b32 s{S_T3}, s{S_X3}, 13")
            out.append(f"s_add_u32 s{S_T3}, s{S_T3}, s{S_KC}")
            out.append(f"buffer_load_dwordx4 v{OFFX}, {srd(S_X)}, s{S_T3} offen lds")
        return out

    stamp("pre")
    for n in range(3):
        for l in chunk(n):
            e(l)
        issue(f"C{n}", 11)
    for l in by_role(dma_kv("K", 0, goff_imm=0), dma_half("K", 0, goff_imm=0) + dma_half("V", 0, goff_imm=0)):
        put(l)
    issue("K0", 8)
    stamp("issued")
    e(f"s_xor_b32 s{S_FLG}, s{S_ISA}, 1")
    e(f"s_lshl_b32 s{S_FLG}, s{S_FLG}, 3")
    e(f"s_add_u32 s{S_FLG}, s{S_FLG}, s{S_B}")
    e(f"s_lshl_b32 s{S_FLG}, s{S_FLG}, 2")
    e(f"s_add_u32 s{S_FLG}, s{S_FLG}, s{S_W}")
    e(f"s_lshl_b32 s{S_FLG}, s{S_FLG}, 8")
    e(f"s_lshl_b32 s{S_T3}, s{S_P}, 2")
    e(f"s_add_u32 s{S_FLG}, s{S_FLG}, s{S_T3}")
    e(f"s_add_u32 s{S_FLG}, s{S_FLG}, {FLAG_BASE}")
    e(f"v_and_b32 v{T+2}, 3, v0")
    e(f"v_lshlrev_b32 v{V_FOFF}, 6, v{T+2}")
    e(f"buffer_load_dword v{V_F0}, v{V_FOFF}, {srd(S_WS)}, s{S_FLG} offen sc1")
    e(f"v_lshlrev_b32 v{T+2}, 2, v{T+2}")
    e(f"s_lshl_b32 s{S_T3}, s{S_W}, 4")
    e(f"v_add_u32 v{V_POFF}, s{S_T3}, v{T+2}")
    e(f"s_lshl_b32 s{S_T3}, s{S_B}, 4")
    e(f"s_add_u32 s{S_T3}, s{S_T3}, s{S_P}")
    e(f"s_lshl_b32 s{S_T3}, s{S_T3}, 6")
    e(f"s_add_u32 s{S_T3}, s{S_T3}, {FLAG_BASE}")
    e(f"buffer_load_dword v{V_C0}, v{V_POFF}, {srd(S_WS)}, s{S_T3} offen sc1")
    e(f"s_add_u32 s{S_T3}, s{S_T3}, 8192")
    e(f"buffer_load_dword v{V_C0+1}, v{V_POFF}, {srd(S_WS)}, s{S_T3} offen sc1")
    e(f"s_lshl_b32 s{S_XFO}, s{S_B}, 4")
    e(f"s_add_u32 s{S_XFO}, s{S_XFO}, s{S_P}")
    e(f"s_lshl_b32 s{S_XFO}, s{S_XFO}, 6")
    e(f"s_add_u32 s{S_XFO}, s{S_XFO}, {XF_BASE}")
    e(f"v_mov_b32 v{V_XF+1}, 0")
    e(f"buffer_load_dword v{V_XF}, v{V_XF+1}, {srd(S_WS)}, s{S_XFO} offen sc1")
    issue("FR", 4)
    for i in range(4):
        e(f"v_add_u32 v{T+2}, {4*(i&1)}, v{T}")
        e(f"v_lshlrev_b32 v{T+2}, 1, v{T+2}")
        e(f"v_xor_b32 v{T+2}, v{T+2}, v{T+1}")
        e(f"v_lshlrev_b32 v{T+2}, 4, v{T+2}")
        e(f"v_lshl_add_u32 v{V_OFFW+i}, v{T}, 10, v{T+2}")
        if i:
            e(f"v_add_u32 v{V_OFFW+i}, {3072*i}, v{V_OFFW+i}")
    e(f"v_xor_b32 v{T+2}, v{T}, v{T+1}")
    e(f"s_lshl_b32 s{S_T3}, s{S_PW}, 3")
    e(f"v_xor_b32 v{T+2}, s{S_T3}, v{T+2}")
    e(f"v_lshlrev_b32 v{T+3}, 8, v{T+1}")
    e(f"v_add_u32 v{T+3}, s{S_KB}, v{T+3}")
    for s in range(4):
        e(f"v_xor_b32 v{T+4}, {4*s}, v{T+2}")
        e(f"v_lshl_add_u32 v{V_KRD+s}, v{T+4}, 4, v{T+3}")
    e(f"v_lshrrev_b32 v{T+2}, 2, v0")
    e(f"v_lshlrev_b32 v{T+3}, 8, v{T+2}")
    e(f"v_add_u32 v{T+3}, s{S_RING}, v{T+3}")
    e(f"v_bfe_u32 v{T+4}, v0, 1, 1")
    e(f"v_lshl_add_u32 v{T+3}, v{T+4}, 4, v{T+3}")
    e(f"v_and_b32 v{T+4}, 1, v0")
    e(f"v_lshl_add_u32 v{T+3}, v{T+4}, 3, v{T+3}")
    e(f"v_and_b32 v{T+2}, 7, v{T+2}")
    e(f"v_lshlrev_b32 v{T+2}, 1, v{T+2}")
    for t in range(8):
        e(f"v_xor_b32 v{T+4}, {2*t}, v{T+2}")
        e(f"v_lshl_add_u32 v{V_WRD+t}, v{T+4}, 4, v{T+3}")
    e(f"v_xor_b32 v{T+2}, s{S_T3}, v{T+2}")
    e(f"s_sub_u32 s{S_CNT}, s{S_VB}, s{S_RING}")
    e(f"v_add_u32 v{T+3}, s{S_CNT}, v{T+3}")
    for t in range(8):
        e(f"v_xor_b32 v{T+4}, {2*t}, v{T+2}")
        e(f"v_lshl_add_u32 v{V_VRD+t}, v{T+4}, 4, v{T+3}")
    e(f"v_lshrrev_b32 v{T+2}, 1, v{T+1}")
    e(f"v_xor_b32 v{T+2}, v{T+2}, v{T}")
    e(f"v_lshlrev_b32 v{T+3}, 7, v{T+1}")
    e(f"v_add_u32 v{T+3}, {MISC0}, v{T+3}")
    e(f"v_lshl_add_u32 v{XR}, v{T+2}, 4, v{T+3}")
    e(f"v_xor_b32 v{T+2}, 4, v{T+2}")
    e(f"v_lshl_add_u32 v{XR+1}, v{T+2}, 4, v{T+3}")
    e(f"v_bfe_u32 v{T+2}, v0, 2, 2")
    e(f"v_bfe_u32 v{T+3}, v0, 4, 1")
    e(f"v_lshl_add_u32 v{T+3}, v{T+3}, 3, v{T+2}")
    e(f"v_lshlrev_b32 v{T+3}, 9, v{T+3}")
    e(f"v_lshrrev_b32 v{T+4}, 5, v0")
    e(f"v_lshl_add_u32 v{T+3}, v{T+4}, 15, v{T+3}")
    e(f"v_and_b32 v{T+4}, 3, v0")
    e(f"s_lshl_b32 s{S_T3}, s{S_W}, 3")
    e(f"v_add_u32 v{T+4}, s{S_T3}, v{T+4}")
    e(f"v_lshlrev_b32 v{T+2}, 2, v{T+2}")
    e(f"v_xor_b32 v{T+4}, v{T+4}, v{T+2}")
    e(f"v_lshl_add_u32 v{WR}, v{T+4}, 4, v{T+3}")
    e(f"v_xor_b32 v{T+4}, 4, v{T+4}")
    e(f"v_lshl_add_u32 v{WR+1}, v{T+4}, 4, v{T+3}")
    e(f"v_add_u32 v{WR+2}, 0x10000, v{WR}")
    e(f"v_add_u32 v{WR+3}, 0x10000, v{WR+1}")
    for i in range(4):
        e(f"v_mov_b32 v{V_ONES+i}, 0x3f803f80")
    for i in range(20):
        e(f"v_mov_b32 v{V_NM+i}, 0")
    for i in range(32):
        e(f"v_mov_b32 v{V_VF+32+i}, 0")
    for i in range(8):
        e(f"v_mov_b32 v{V_P+i}, 0")
    for i in range(144, 180):
        e(f"v_accvgpr_write_b32 a{i}, 0")
    e(f"s_mov_b32 s{S_C2}, {f2u(SCALE_C):#x}")
    e(f"s_mov_b32 s{S_C2+1}, {f2u(SCALE_C):#x}")
    e(f"s_mov_b32 s{S_THRESH}, {NEG_INF:#x}")
    e(f"s_mov_b32 s{S_DMIN}, {NEG_INF:#x}")
    e(f"s_lshl_b32 s{S_WOB}, s{S_H0}, 17")
    e(f"s_lshl_b32 s{S_T3}, s{S_W}, 8")
    e(f"s_add_u32 s{S_WOB}, s{S_WOB}, s{S_T3}")

    def kslot(par):
        return 2 * (par ^ 1)

    def k_reads(par, slot=None):
        if slot is None:
            slot = kslot(par)
        out = []
        for kt in range(2):
            for s in range(4):
                d = A_KF + par * 32 + (kt * 4 + s) * 4
                out.append(f"ds_read_b128 {ar(d)}, v{V_KRD+s} offset:{slot*SLOT + kt*4096}")
        return out

    def v_reads(par, slot=None):
        if slot is None:
            slot = kslot(par) + 1
        out = []
        for t in range(8):
            for hf in range(2):
                d = V_VF + par * 32 + t * 4 + hf * 2
                out.append(f"ds_read_b64_tr_b16 v[{d}:{d+1}], v{V_VRD+t} offset:{slot*SLOT + hf*4096}")
        return out

    A_XF = 0
    A_WF = 80
    QACC = V_Q

    def qreads(n):
        out = []
        xb = (n % 3) * 10240
        xf = A_XF + (n & 1) * 40
        wf = A_WF + (n & 1) * 32
        for ks in range(2):
            for tp in range(4):
                sp, par = tp >> 1, tp & 1
                for hf in range(2):
                    off = wslot(n) * SLOT + hf * 2048 + 8 * par
                    d = wf + (ks * 4 + tp) * 4 + hf * 2
                    out.append(f"ds_read_b64_tr_b16 a[{d}:{d+1}], v{WR + ks*2 + sp} offset:{off}")
            for j in range(5):
                d = xf + (ks * 5 + j) * 4
                out.append(f"ds_read_b128 {ar(d)}, v{XR+ks} offset:{xb + j*2048}")
        return out

    def qmfma(n):
        out = []
        xf = A_XF + (n & 1) * 40
        wf = A_WF + (n & 1) * 32
        for ks in range(2):
            for j in range(5):
                for tp in range(4):
                    d = QACC + (tp * 5 + j) * 4
                    cc = "0" if (n == 0 and ks == 0) else vr(d)
                    out.append(f"v_mfma_f32_16x16x32_bf16 {vr(d)}, {ar(wf + (ks*4+tp)*4)}, {ar(xf + (ks*5+j)*4)}, {cc}")
        return out

    def refill(n):
        out = []
        if n == 2:
            out.append((by_role(dma_kv("V", 0, goff_imm=0), warm_loads(range(8))), "V0", 8))
        if n + 3 < 8:
            out.append((chunk(n + 3), f"C{n+3}", 11))
        if n == 5:
            out.append((by_role(dma_kv("K", 0, goff_imm=8192) + dma_kv("V", 1, goff_imm=8192),
                                dma_half("K", 1, goff_imm=8192) + dma_half("V", 1, goff_imm=8192) + dma_half("K", 0, goff_imm=2 * 8192) + warm_loads((0, 1, 2, 3))), "K1", 16))
        if n == 6:
            out.append((by_role(dma_kv("K", 2, goff_imm=2 * 8192), wo_chunk(0, S_RING, 2 * SLOT)), "K2", 8))
        return out

    wait_tag("C0")
    stamp("c0")
    e("s_barrier")
    for l in qreads(0):
        e(l)
    e("s_waitcnt lgkmcnt(0)")
    e("s_barrier")
    for r, tag, cnt in refill(0):
        for l in r:
            put(l)
        issue(tag, cnt)
    for n in range(8):
        M = qmfma(n)
        if n + 1 < 8:
            wait_tag(f"C{n+1}")
            R = qreads(n + 1)
            if n + 1 == 2:
                wait_tag("K0")
                R = R + k_reads(0, slot=0)
            if n + 1 == 5:
                wait_tag("V0")
                R = R + v_reads(0, slot=0)
            stamp(f"c{n+1}")
            e("s_barrier")
            interleave(M[:20], R)
            e("s_waitcnt lgkmcnt(0)")
            e("s_barrier")
            rr = refill(n + 1)
            plain = [l for x in rr if not x[0][0].startswith("s_cmp_eq") for l in x[0]]
            first = True
            for x in rr:
                if x[0][0].startswith("s_cmp_eq"):
                    for l in x[0]:
                        put(l)
            interleave(M[20:], plain)
            for _, tag, cnt in rr:
                issue(tag, cnt)
        else:
            Z = [f"v_accvgpr_write_b32 a{i}, 0" for i in list(range(0, 40)) + list(range(80, 112))]
            interleave(M, Z)
    stamp("qdone")
    for i in list(range(40, 80)) + list(range(112, 144)):
        e(f"v_accvgpr_write_b32 a{i}, 0")
    e(f"v_add_u32 v{T}, s{S_RING}, v{V_L16}")
    e(f"v_add_u32 v{T+1}, s{S_MISC}, v{V_L16}")
    e(f"v_add_u32 v{T+2}, s{S_PRING}, v{V_L16}")
    e(f"v_add_u32 v{T+3}, s{S_PMISC}, v{V_L16}")
    for sp in range(2):
        for j in range(5):
            qd = V_Q + (sp * 5 + j) * 4
            for par in range(2):
                a = QACC + ((2 * sp + par) * 5 + j) * 4
                e(f"v_pk_mul_f32 v[{a}:{a+1}], v[{a}:{a+1}], s[{S_C2}:{S_C2+1}]")
                e(f"v_pk_mul_f32 v[{a+2}:{a+3}], v[{a+2}:{a+3}], s[{S_C2}:{S_C2+1}]")
                e(f"v_cvt_pk_bf16_f32 v{qd+2*par}, v{a}, v{a+1}")
                e(f"v_cvt_pk_bf16_f32 v{qd+2*par+1}, v{a+2}, v{a+3}")
            f = sp * 5 + j
            if f < 8:
                e(f"ds_write_b128 v{T}, {vr(V_Q + f*4)} offset:{3*SLOT + f*1024}")
            else:
                e(f"ds_write_b128 v{T+1}, {vr(V_Q + f*4)} offset:{(f-8)*1024}")
    e("s_waitcnt lgkmcnt(0)")
    e("s_barrier")
    for f in range(10):
        if f < 8:
            e(f"ds_read_b128 {vr(V_Q + 40 + f*4)}, v{T+2} offset:{3*SLOT + f*1024}")
        else:
            e(f"ds_read_b128 {vr(V_Q + 40 + f*4)}, v{T+3} offset:{(f-8)*1024}")
    e("s_waitcnt lgkmcnt(0)")
    e("s_barrier")
    for l in wo_chunk(4, S_MISC, 0):
        e(l)
    if spread:
        xl = warm_loads((0, 1, 2, 3, 5, 6, 7)) + dma_kv("V", 3, goff_imm=2 * 8192)[0:3]
        yl = wo_chunk(1, S_RING, 3 * SLOT)
    else:
        xl = dma_kv("V", 3, goff_imm=2 * 8192) + warm_loads((0, 1, 2, 3, 5, 6, 7))
        yl = wo_chunk(1, S_RING, 3 * SLOT) + warm_loads((2, 3, 5, 6, 7, 5, 6))
    for l in by_role(xl, yl):
        put(l)
    e(f"s_mov_b32 s{S_KOFF}, {3*8192}")
    e(f"s_add_u32 s{S_VOFF}, s{S_HOFF}, {2*8192}")
    e(f"s_mov_b32 s{S_CNT}, 0")

    def qk(par, j, sb):
        out = []
        for kt in range(2):
            d = V_S + sb * 8 + kt * 4
            for s in range(4):
                cc = vr(V_NM + j * 4) if s == 0 else vr(d)
                out.append(f"v_mfma_f32_16x16x32_bf16 {vr(d)}, {ar(A_KF + par*32 + (kt*4+s)*4)}, {vr(V_Q + (s*5+j)*4)}, {cc}")
        return out

    def pv(par, j, pb):
        out = []
        for t in range(8):
            d = A_O + (t * 5 + j) * 4
            out.append(f"v_mfma_f32_16x16x32_bf16 {ar(d)}, {vr(V_VF + par*32 + t*4)}, {vr(V_P + pb*4)}, {ar(d)}")
        d = A_L + j * 4
        out.append(f"v_mfma_f32_16x16x32_bf16 {ar(d)}, {vr(V_ONES)}, {vr(V_P + pb*4)}, {ar(d)}")
        return out

    stamp("loop")
    for l in qk(0, 0, 0):
        e(l)
    e(f"s_cmp_eq_u32 s{S_ISA}, 1")
    e("s_nop 5")
    e("s_cbranch_scc0 L_preX")
    e(f"s_add_u32 s{S_KOFF}, s{S_KOFF}, s{S_HOFF}")
    e("s_branch L_loopY")

    SPREAD = [(0, 5, "V", 1), (0, 8, "V", 2), (0, 11, "V", 3), (0, 15, "V", 4),
              (1, 6, "V", 5), (1, 10, "V", 6), (1, 14, "V", 7),
              (2, 5, "K", 0), (2, 9, "K", 1), (2, 15, "K", 2),
              (3, 5, "K", 3), (3, 10, "K", 4), (3, 15, "K", 5),
              (4, 5, "K", 6), (4, 9, "K", 7), (4, 15, "V", 0)]
    seq = []
    marks = {}
    for it in range(6):
        for stp in range(5):
            if stp == 1:
                marks[("K", it)] = len(seq)
            if stp == 3:
                marks[("V", it)] = len(seq)
            for (st_, pos, which, idx) in sorted([x for x in SPREAD if x[0] == stp], key=lambda x: x[1]):
                tile = it + 3 if (which == "K" or st_ == 4) else it + 2
                seq.append((which, tile))
    it = 4
    lastK = max(i for i, x in enumerate(seq) if x == ("K", it + 1))
    lastV = max(i for i, x in enumerate(seq) if x == ("V", it + 1))
    NK = marks[("K", it)] - 1 - lastK
    NV = marks[("V", it)] - 1 - lastV
    print("spread waits", NK, NV)

    def main_loop(R, nt):
        slow_blocks = []

        def sm(j, sb, uid):
            s = V_S + sb * 8
            p = V_P + sb * 4
            t0, t1 = V_T, V_T + 1
            ex = [f"v_exp_f32 v{s+i}, v{s+i}" for i in range(8)]
            cv = [f"v_cvt_pk_bf16_f32 v{p+i}, v{s+2*i}, v{s+2*i+1}" for i in range(4)]
            G = [[f"v_max3_f32 v{t0}, v{s}, v{s+1}, v{s+2}", f"v_max3_f32 v{t1}, v{s+3}, v{s+4}, v{s+5}"],
                 [f"v_max3_f32 v{t0}, v{t0}, v{s+6}, v{s+7}", f"v_max_f32 v{t0}, v{t0}, v{t1}"],
                 [f"v_cmp_lt_f32 vcc, s{S_THRESH}, v{t0}", f"s_cbranch_vccnz L_slow{R}{uid}", f"L_ret{R}{uid}:"],
                 [ex[0]], [ex[1]], [], [ex[2]], [ex[3]], [cv[0]], [ex[4]], [ex[5]], [cv[1]], [ex[6]], [ex[7]], [cv[2]], [], [cv[3]]]
            slow_blocks.append((uid, j, sb))
            return G

        g.lab(f"L_loop{R}")
        hooks = []
        for par in range(2):
            for j in range(5):
                u = par * 5 + j
                sb = u & 1
                mq = qk(par, j + 1, sb ^ 1) if j < 4 else qk(par ^ 1, 0, sb ^ 1)
                mp = pv(par, j - 1, sb ^ 1) if j > 0 else pv(par ^ 1, 4, sb ^ 1)
                M = mq + mp
                G = sm(j, sb, u)
                extra = [[] for _ in range(17)]

                def place_dma(d):
                    extra[5] += d[0:3]
                    extra[8] += [d[3]]
                    extra[9] += [d[4]]
                    extra[11] += [d[5]]
                    extra[12] += d[6:8]
                    extra[13] += [d[8]]
                    extra[14] += [d[9]]
                    extra[15] += [d[10]]
                    extra[16] += [d[11]]

                def hook(c, slot, cnt):
                    nm = f"L_hk{R}{c}"
                    extra[3] += [f"s_cmp_eq_u32 s{S_CNT}, {cnt}", f"s_cbranch_scc1 {nm}", f"{nm}_ret:"]
                    hooks.append((nm, c, slot))

                if par == 1 and j == 0:
                    extra[0] += [f"s_mov_b32 s{S_THRESH}, {f2u(THR_T):#x}", f"s_mov_b32 s{S_DMIN}, 0"]
                if R == "X" and not spread:
                    if j == 1:
                        extra[0] = ["s_waitcnt vmcnt(24)"]
                        r = k_reads(par ^ 1)
                        for i, pos in enumerate((5, 5, 8, 8, 11, 11, 15, 15)):
                            extra[pos].append(r[i])
                    if j == 2:
                        extra[0] = ["s_waitcnt lgkmcnt(0)"]
                        if par == 1:
                            hook(0, 2, 6)
                        else:
                            hook(2, 0, 7)
                        place_dma(dma_kv("K", kslot(par ^ 1), nt=nt))
                    if j == 3:
                        extra[0] = ["s_waitcnt vmcnt(24)"]
                        r = v_reads(par ^ 1)
                        for i in range(16):
                            extra[1 + i].append(r[i])
                    if j == 4:
                        extra[0] = ["s_waitcnt lgkmcnt(0)"]
                        if par == 1:
                            hook(1, 3, 6)
                        else:
                            hook(3, 1, 7)
                        place_dma(dma_kv("V", kslot(par ^ 1) + 1, nt=nt))
                        extra[16] += [f"s_add_u32 s{S_KOFF}, s{S_KOFF}, 8192"]
                elif R == "X":
                    for (st_, pos, which, idx) in SPREAD:
                        if st_ != j:
                            continue
                        if which == "K":
                            slot = kslot(par ^ 1)
                            so = S_KOFF
                        else:
                            late = (st_ < 4)
                            slot = (kslot(par) + 1) if late else (kslot(par ^ 1) + 1)
                            so = S_VOFF
                        half, i = idx >> 2, idx & 3
                        s_ = S_K if which == "K" else S_V
                        vo = V_OFFK + i if which == "K" else V_OFFV + (i & 1)
                        pre = [f"s_add_u32 m0, s{S_DRING}, {slot*SLOT + half*4096}"]
                        if half:
                            pre.append(f"s_add_u32 s{S_T3}, s{so}, 4096")
                            sreg = S_T3
                        else:
                            sreg = so
                        extra[pos - 1] += pre
                        extra[pos] += [f"buffer_load_dwordx4 v{vo}, {srd(s_)}, s{sreg} offen offset:{i*1024} {nt} lds"]
                        if which == "K" and idx == 7:
                            extra[pos] += [f"s_add_u32 s{S_KOFF}, s{S_KOFF}, 8192"]
                        if which == "V" and idx == 7:
                            extra[pos] += [f"s_add_u32 s{S_VOFF}, s{S_VOFF}, 8192"]
                    if j == 1:
                        extra[0] = [f"s_waitcnt vmcnt({NK})"] + extra[0]
                        r = k_reads(par ^ 1)
                        for i, pos in enumerate((5, 5, 8, 8, 11, 11, 15, 15)):
                            extra[pos].append(r[i])
                    if j == 2:
                        extra[0] = ["s_waitcnt lgkmcnt(0)"] + extra[0]
                        if par == 1:
                            hook(0, 2, 6)
                        else:
                            hook(2, 0, 7)
                    if j == 3:
                        extra[0] = [f"s_waitcnt vmcnt({NV})"] + extra[0]
                        r = v_reads(par ^ 1)
                        for i in range(16):
                            extra[1 + i].append(r[i])
                    if j == 4:
                        extra[0] = ["s_waitcnt lgkmcnt(0)"] + extra[0]
                        if par == 1:
                            hook(1, 3, 6)
                        else:
                            hook(3, 1, 7)
                else:
                    if j == 1:
                        extra[0] = [f"s_waitcnt vmcnt({8 + 4*pf})", "s_barrier"]
                        r = k_reads(par ^ 1, slot=par ^ 1)
                        for i, pos in enumerate((1, 1, 5, 5, 8, 8, 11, 11)):
                            extra[pos].append(r[i])
                        if par == 1:
                            extra[3] += [f"s_cmp_eq_u32 s{S_CNT}, 7", "s_cbranch_scc1 L_hkYW", "L_hkYW_ret:"]
                        d = dma_half("V", par, nt=nt)
                        extra[12] += d[0:3]
                        extra[14] += [d[3]]
                        extra[15] += [d[4]]
                        extra[16] += [d[5], f"s_add_u32 s{S_VOFF}, s{S_VOFF}, 8192"]
                    if j == 2:
                        extra[12] += ["s_waitcnt lgkmcnt(0)"]
                    if j == 3:
                        extra[0] = [f"s_waitcnt vmcnt({8 + 2*pf})", "s_barrier"]
                        r = v_reads(par ^ 1, slot=par ^ 1)
                        for i in range(16):
                            extra[1 + i].append(r[i])
                    if j == 4:
                        if par == 1:
                            extra[1] += [f"s_cmp_eq_u32 s{S_CNT}, 6", "s_cbranch_scc1 L_hkYD", "L_hkYD_ret:"]
                        d = dma_half("K", par ^ 1, nt=nt)
                        extra[3] += d[0:3]
                        extra[5] += [d[3]]
                        extra[6] += [d[4]]
                        extra[8] += [d[5], f"s_add_u32 s{S_KOFF}, s{S_KOFF}, 8192"]
                        if pf:
                            h = helper(pf)
                            for i, l in enumerate(h):
                                extra[min(16, 9 + i)].append(l)
                        extra[16] += ["s_waitcnt lgkmcnt(0)"]
                g.c(f"---- {R} step par={par} j={j}")
                for i in range(17):
                    if i == 0:
                        for x in extra[0]:
                            put(x)
                    e(M[i])
                    for x in G[i]:
                        put(x)
                    if i > 0:
                        for x in extra[i]:
                            put(x)
        e(f"s_add_u32 s{S_CNT}, s{S_CNT}, 1")
        e(f"s_cmp_lt_u32 s{S_CNT}, 8")
        e(f"s_cbranch_scc1 L_loop{R}")
        if R == "X" and defer:
            e(f"s_cmp_lg_u32 s{S_W}, 0")
            e("s_cbranch_scc1 L_epi")
            e(f"v_add_u32 v{V_XF}, 1, v{V_XF}")
            e("s_mov_b64 exec, 1")
            e(f"buffer_store_dword v{V_XF}, v{V_XF+1}, {srd(S_WS)}, s{S_XFO} offen sc1")
            e("s_mov_b64 exec, -1")
        if R == "Y":
            e(f"s_waitcnt vmcnt({8 + 2*pf})")
        e("s_branch L_epi")
        if R == "Y":
            g.lab("L_hkYD")
            e(f"s_mov_b32 s{S_K+2}, 0")
            e(f"s_mov_b32 s{S_V+2}, 0")
            e(f"s_mov_b32 s{S_KDST}, 0x30000")
            e(f"s_mov_b32 s{S_VDST}, 0x30000")
            e("s_branch L_hkYD_ret")
            g.lab("L_hkYW")
            for l in wo_chunk(2, S_RING, 0) + wo_chunk(3, S_RING, SLOT):
                e(l)
            e("s_branch L_hkYW_ret")
        for nm, c, slot in hooks:
            g.lab(nm)
            if c == 0:
                e(f"s_mov_b32 s{S_K+2}, 0")
                e(f"s_mov_b32 s{S_V+2}, 0")
                e(f"s_mov_b32 s{S_DRING}, 0x30000")
            for l in wo_chunk(c, S_RING, slot * SLOT):
                e(l)
            e(f"s_branch {nm}_ret")
        for uid, j, sb in slow_blocks:
            t0, t1, t2, t3 = V_T, V_T + 1, V_T + 2, V_T + 3
            s = V_S + sb * 8
            g.lab(f"L_slow{R}{uid}")
            e(f"v_mov_b32 v{t1}, v{t0}")
            e("s_nop 1")
            e(f"v_permlane32_swap_b32 v{t0}, v{t1}")
            e(f"v_max_f32 v{t0}, v{t0}, v{t1}")
            e(f"v_mov_b32 v{t1}, v{t0}")
            e("s_nop 1")
            e(f"v_permlane16_swap_b32 v{t0}, v{t1}")
            e(f"v_max_f32 v{t0}, v{t0}, v{t1}")
            e(f"v_max_f32 v{t0}, s{S_DMIN}, v{t0}")
            e(f"v_max_f32 v{t2}, 0, v{t0}")
            e(f"v_exp_f32 v{t2}, -v{t2}")
            e(f"v_sub_f32 v{V_NM+4*j}, v{V_NM+4*j}, v{t0}")
            for i in range(8):
                e(f"v_sub_f32 v{s+i}, v{s+i}, v{t0}")
            for i in range(1, 4):
                e(f"v_mov_b32 v{V_NM+4*j+i}, v{V_NM+4*j}")
            regs = [A_O + (t * 5 + j) * 4 + r for t in range(8) for r in range(4)] + [A_L + j * 4 + r for r in range(4)]
            for k in range(0, 36, 2):
                e(f"v_accvgpr_read_b32 v{t1}, a{regs[k]}")
                e(f"v_accvgpr_read_b32 v{t3}, a{regs[k+1]}")
                e(f"v_mul_f32 v{t1}, v{t1}, v{t2}")
                e(f"v_mul_f32 v{t3}, v{t3}, v{t2}")
                e(f"v_accvgpr_write_b32 a{regs[k]}, v{t1}")
                e(f"v_accvgpr_write_b32 a{regs[k+1]}, v{t3}")
            e("s_nop 1")
            e(f"s_branch L_ret{R}{uid}")

    g.lab("L_preX")
    e(f"s_mov_b32 s{S_VOFF}, {2*8192}")
    main_loop("X", nt_x)
    main_loop("Y", nt_y)

    g.lab("L_epi")
    q.clear()
    done[0] = -1
    for c in range(4):
        issue(f"W{c}", 8)
    WFA, WFB = A_KF, A_KF + 32
    WFC = [160 + 4 * k for k in range(5)] + [244 + 4 * k for k in range(3)]
    FA = [WFA + 4 * k for k in range(8)]
    FB = [WFB + 4 * k for k in range(8)]

    def w_reads(off, dst, tiles=range(8), abase=V_WRD):
        out = []
        for k, t in enumerate(tiles):
            for hf in range(2):
                d = dst[k] + hf * 2
                out.append(f"ds_read_b64_tr_b16 a[{d}:{d+1}], v{abase+t} offset:{off + hf*4096}")
        return out

    EA, EP, EM, EMP, EH = 1, 2, 3, 4, 5
    W4A = 8
    X0 = [wait_str("W1")] + w_reads(2 * SLOT, FA) + w_reads(3 * SLOT, FB)
    X0 += [f"v_add_u32 v{EA}, s{S_RING}, v{V_L16}", f"v_add_u32 v{EP}, s{S_PRING}, v{V_L16}",
           f"v_lshlrev_b32 v{EH}, 2, v0", f"v_add_u32 v{EM}, s{S_RING}, v{EH}", f"v_add_u32 v{EMP}, s{S_PRING}, v{EH}",
           f"v_add_u32 v{EH}, 0x10000, v{V_L16}", f"s_sub_u32 s{S_T3}, s{S_MISC}, s{S_RING}"]
    X0 += [f"v_add_u32 v{W4A+t}, s{S_T3}, v{V_WRD+t}" for t in range(8)]
    e("s_nop 1")
    interleave(pv(1, 4, 1), X0)
    stamp("attn")
    VL = V_S
    e("s_nop 3")
    for j in range(5):
        e(f"v_accvgpr_read_b32 v{VL+j}, a{A_L + j*4}")
    wait_tag("W2")
    for l in w_reads(0, WFC):
        e(l)
    e("s_waitcnt lgkmcnt(0)")
    for f in range(20):
        off = 2 * SLOT + f * 1024 if f < 16 else (f - 16) * 1024
        e(f"ds_write_b128 v{EA}, {ar(A_O + 80 + f*4)} offset:{off}")
    for j in range(5):
        e(f"ds_write_b32 v{EM}, v{V_NM+4*j} offset:{4096 + j*256}")
        e(f"ds_write_b32 v{EM}, v{VL+j} offset:{4096 + (5+j)*256}")
    e("s_waitcnt lgkmcnt(0)")
    e("s_barrier")
    stamp("b1")
    RX = V_Q
    for j in range(5):
        e(f"ds_read_b32 v{VL+5+j}, v{EMP} offset:{4096 + j*256}")
        e(f"ds_read_b32 v{VL+10+j}, v{EMP} offset:{4096 + (5+j)*256}")
    for f in range(20):
        off = 2 * SLOT + f * 1024 if f < 16 else (f - 16) * 1024
        e(f"ds_read_b128 {vr(RX + f*4)}, v{EP} offset:{off}")
    OWN = V_VF
    for i in range(64):
        e(f"v_accvgpr_read_b32 v{OWN+i}, a{A_O+i}")
    e("s_waitcnt lgkmcnt(15)")
    SC = V_T
    ta, tb, tc = V_P, V_P + 1, V_P + 2
    for j in range(5):
        e(f"v_min_f32 v{ta}, v{V_NM+4*j}, v{VL+5+j}")
        e(f"v_sub_f32 v{tb}, v{ta}, v{V_NM+4*j}")
        e(f"v_sub_f32 v{tc}, v{ta}, v{VL+5+j}")
        e(f"v_exp_f32 v{tb}, v{tb}")
        e(f"v_exp_f32 v{tc}, v{tc}")
        e("s_nop 0")
        e(f"v_mul_f32 v{ta}, v{tb}, v{VL+j}")
        e(f"v_fma_f32 v{ta}, v{tc}, v{VL+10+j}, v{ta}")
        e(f"v_rcp_f32 v{ta}, v{ta}")
        e("s_nop 0")
        e(f"v_mul_f32 v{SC+2*j}, v{tb}, v{ta}")
        e(f"v_mul_f32 v{SC+2*j+1}, v{tc}, v{ta}")
    OWN2 = V_NM
    for i in range(16):
        e(f"v_accvgpr_read_b32 v{OWN2+i}, a{A_O+64+i}")
    e("s_waitcnt lgkmcnt(0)")
    for sp in range(2):
        for j in range(5):
            od = RX + (sp * 5 + j) * 4
            for par in range(2):
                f = (2 * sp + par) * 5 + j
                r = RX + f * 4
                o = OWN + f * 4 if f < 16 else OWN2 + (f - 16) * 4
                sc = f"v[{SC+2*j}:{SC+2*j+1}]"
                e(f"v_pk_mul_f32 v[{r}:{r+1}], v[{r}:{r+1}], {sc} op_sel:[0,1] op_sel_hi:[1,1]")
                e(f"v_pk_mul_f32 v[{r+2}:{r+3}], v[{r+2}:{r+3}], {sc} op_sel:[0,1] op_sel_hi:[1,1]")
                e(f"v_pk_fma_f32 v[{r}:{r+1}], v[{o}:{o+1}], {sc}, v[{r}:{r+1}] op_sel_hi:[1,0,1]")
                e(f"v_pk_fma_f32 v[{r+2}:{r+3}], v[{o+2}:{o+3}], {sc}, v[{r+2}:{r+3}] op_sel_hi:[1,0,1]")
                e(f"v_cvt_pk_bf16_f32 v{od+2*par}, v{r}, v{r+1}")
                e(f"v_cvt_pk_bf16_f32 v{od+2*par+1}, v{r+2}, v{r+3}")
            e(f"ds_write_b128 v{EP}, {vr(od)} offset:{2*SLOT + (sp*5+j)*1024}")
    e("s_waitcnt lgkmcnt(0)")
    e("s_barrier")
    stamp("b2")
    A_OF = 0
    for wp in range(4):
        rg = wp ^ 1
        va = V_L16 if rg < 2 else EH
        for f in range(10):
            e(f"ds_read_b128 {ar(A_OF + (wp*10+f)*4)}, v{va} offset:{(rg & 1)*RING + 2*SLOT + f*1024}")
    S_PB = S_T2
    e(f"s_xor_b32 s{S_PB}, s{S_ISA}, 1")
    e(f"s_lshl_b32 s{S_PB}, s{S_PB}, 3")
    e(f"s_add_u32 s{S_PB}, s{S_PB}, s{S_B}")
    e(f"s_lshl_b32 s{S_PB}, s{S_PB}, 4")
    e(f"s_add_u32 s{S_PB}, s{S_PB}, s{S_P}")
    e(f"s_mul_i32 s{S_PB}, s{S_PB}, {PART}")
    e(f"s_mul_i32 s{S_T3}, s{S_W}, 20480")
    e(f"s_add_u32 s{S_PB}, s{S_PB}, s{S_T3}")
    e(f"v_add_u32 v{V_F0}, 1, v{V_F0}")
    e("s_waitcnt lgkmcnt(0)")
    e("s_barrier")
    stamp("comb")
    YACC = 40
    PK = 200

    def ymfma(c, wf, tiles=range(8), first=False):
        out = []
        for k, t in enumerate(tiles):
            for j in range(5):
                d = YACC + (t * 5 + j) * 4
                cc = "0" if first else vr(d)
                out.append(f"v_mfma_f32_16x16x32_bf16 {vr(d)}, {ar(wf[k])}, {ar(A_OF + (c*5+j)*4)}, {cc}")
        return out

    interleave(ymfma(0, FA, first=True), wo_chunk(5, S_RING, 2 * SLOT) + wo_chunk(6, S_RING, 3 * SLOT) + wo_chunk(7, S_RING, 0))
    issue("W5", 8)
    issue("W6", 8)
    issue("W7", 8)
    wait_tag("W3")
    interleave(ymfma(1, FB), w_reads(1 * SLOT, FA), end=24)
    def u_reads(u, dst):
        out = []
        tl = (2 * u, 2 * u + 1)
        out += w_reads(0, dst[0:2], tiles=tl, abase=W4A)
        out += w_reads(2 * SLOT, dst[2:4], tiles=tl)
        out += w_reads(3 * SLOT, dst[4:6], tiles=tl)
        out += w_reads(0, dst[6:8], tiles=tl)
        return out

    def u_mfma(u, src):
        out = []
        for cc in range(4):
            out += ymfma(4 + cc, src[2 * cc:2 * cc + 2], tiles=(2 * u, 2 * u + 1))
        return out

    def u_store(u):
        out = []
        for j in range(5):
            pk = PK + (j & 1) * 4
            for par in range(2):
                a = YACC + ((2 * u + par) * 5 + j) * 4
                out.append(f"v_cvt_pk_bf16_f32 v{pk+2*par}, v{a}, v{a+1}")
                out.append(f"v_cvt_pk_bf16_f32 v{pk+2*par+1}, v{a+2}, v{a+3}")
            out.append(f"s_add_u32 s{S_T3}, s{S_PB}, {(u*5+j)*1024}")
            out.append(f"buffer_store_dwordx4 {vr(pk)}, v{V_L16}, {srd(S_WS)}, s{S_T3} offen sc1")
        return out

    def flag(u):
        return [f"s_mov_b64 exec, {1 << u}",
                f"buffer_store_dword v{V_F0}, v{V_FOFF}, {srd(S_WS)}, s{S_FLG} offen sc1",
                "s_mov_b64 exec, -1"]

    for l in ymfma(2, WFC):
        e(l)
    e("s_waitcnt lgkmcnt(0)")
    w7 = wait_str("W7")
    stamp("y2")
    interleave(ymfma(3, FA), [w7] + u_reads(0, FB), start=20)
    stamp("y3")
    if defer:
        e(f"s_cmp_eq_u32 s{S_ISA}, 0")
        e("s_cbranch_scc1 L_dfr_done")
        e(f"s_mov_b32 s{S_CNT}, 0")
        g.lab("L_dfr")
        e(f"buffer_load_dword v{V_T}, v{V_XF+1}, {srd(S_WS)}, s{S_XFO} offen sc1")
        e("s_waitcnt vmcnt(0)")
        e(f"v_cmp_ne_u32 vcc, v{V_XF}, v{V_T}")
        e("s_cbranch_vccnz L_dfr_done")
        e("s_sleep 2")
        e(f"s_add_u32 s{S_CNT}, s{S_CNT}, 1")
        e(f"s_cmp_lt_u32 s{S_CNT}, {defer_max}")
        e("s_cbranch_scc1 L_dfr")
        g.lab("L_dfr_done")
    for u in range(4):
        src = FB if u % 2 == 0 else WFC
        nxt = WFC if u % 2 == 0 else FB
        e("s_waitcnt lgkmcnt(0)")
        X = []
        if u + 1 < 4:
            X += u_reads(u + 1, nxt)
        if u >= 1:
            X = X[:6] + u_store(u - 1) + X[6:]
        interleave(u_mfma(u, src), X, start=3, end=36)
        if u >= 1:
            issue(f"S{u-1}", 5)
        if u >= 2:
            wait_tag(f"S{u-2}")
            for l in flag(u - 2):
                e(l)
            issue(f"F{u-2}", 1)
    stamp("yu")
    e("s_nop 7")
    for l in u_store(3):
        e(l)
    issue("S3", 5)
    wait_tag("S2")
    for l in flag(2):
        e(l)
    issue("F2", 1)
    wait_tag("S3")
    for l in flag(3):
        e(l)
    issue("F3", 1)
    stamp("prod")
    e("s_barrier")
    e(f"s_cmp_lg_u32 s{S_W}, 0")
    e("s_cbranch_scc1 L_nomark")
    e(f"v_mov_b32 v{T+1}, 1")
    e(f"v_mov_b32 v{T+2}, s2")
    e("s_mov_b64 exec, 1")
    e(f"buffer_store_byte v{T+1}, v{T+2}, {srd(S_DBG)}, 0 offen sc1")
    e("s_mov_b64 exec, -1")
    g.lab("L_nomark")
    e(f"s_cmp_eq_u32 s{S_ISA}, 0")
    e("s_cbranch_scc1 L_fin")
    e(f"v_lshrrev_b32 v{T+9}, 2, v{V_POFF}")
    e(f"v_and_b32 v{T+10}, 1, v{T+9}")
    e(f"v_lshrrev_b32 v{T+9}, 1, v{T+9}")
    e(f"v_lshl_add_u32 v{T+9}, v{T+10}, 4, v{T+9}")
    e(f"s_lshl_b32 s{S_T3}, s{S_B}, 5")
    e(f"v_add_u32 v{T+9}, s{S_T3}, v{T+9}")
    S_BR = S_CNT
    e(f"s_mov_b32 s{S_BR}, 0")
    e("s_mov_b32 s4, 0x00003f80")
    e("s_mov_b32 s5, 0x3f800000")
    e(f"v_and_b32 v{T+5}, 15, v0")
    e(f"v_lshrrev_b32 v{T+6}, 4, v0")
    e(f"v_lshlrev_b32 v{T+6}, 3, v{T+6}")
    e(f"v_lshl_add_u32 v{T+5}, v{T+5}, 11, v{T+6}")
    e(f"s_mul_i32 s6, s{S_B}, 163840")
    e(f"s_lshl_b32 s{S_T3}, s{S_P}, 6")
    e(f"s_add_u32 s6, s6, s{S_T3}")
    e(f"s_mul_i32 s7, s{S_W}, 10240")
    e(f"v_add_u32 v{T+7}, s7, v{V_L16}")
    e(f"s_lshl_b32 s7, s{S_W}, 11")
    e(f"v_add_u32 v{T+8}, s7, v{V_L16}")
    g.lab("L_cons")
    e(f"s_lshl_b32 s8, s{S_BR}, 3")
    e(f"s_add_u32 s8, s8, s{S_B}")
    e("s_lshl_b32 s8, s8, 4")
    e(f"s_add_u32 s9, s8, s{S_P}")
    e("s_lshl_b32 s9, s9, 6")
    e(f"s_add_u32 s9, s9, {FLAG_BASE}")
    e(f"s_lshl_b32 s10, s{S_W}, 2")
    e("s_add_u32 s10, s10, s8")
    e(f"s_mul_i32 s10, s10, {PART}")
    e(f"s_mul_i32 s11, s{S_P}, 5120")
    e("s_add_u32 s10, s10, s11")
    e(f"s_xor_b32 s13, s{S_BR}, 1")
    e("s_lshl_b32 s13, s13, 3")
    e("s_mov_b32 s14, 0")
    LD, AC = 80, 40
    for i in range(40):
        e(f"v_mov_b32 v{AC+i}, 0")
    g.lab("L_poll")
    e(f"buffer_load_dword v{T+3}, v{V_POFF}, {srd(S_WS)}, s9 offen sc1")
    e("s_waitcnt vmcnt(0)")
    e(f"v_cmp_eq_u32 vcc, v{V_C0}, v{T+3}")
    e("s_cbranch_vccz L_go")
    if poll_sleep:
        e(f"s_sleep {poll_sleep}")
    e("s_add_u32 s14, s14, 1")
    e("s_and_b32 s15, s14, 31")
    e("s_cbranch_scc1 L_poll")
    e(f"buffer_load_ubyte v{T+3}, v{T+9}, {srd(S_DBG)}, s13 offen sc1")
    e("s_waitcnt vmcnt(0)")
    e(f"v_cmp_eq_u32 vcc, 0, v{T+3}")
    e("s_cbranch_vccnz L_poll")
    g.lab("L_go")
    stamp("poll")
    for y in range(4):
        e(f"s_add_u32 s11, s10, {y*PART}")
        for j in range(5):
            if j < 4:
                e(f"buffer_load_dwordx4 {vr(LD + (y*5+j)*4)}, v{V_L16}, {srd(S_WS)}, s11 offen offset:{j*1024} sc1")
            else:
                e(f"s_add_u32 s11, s11, 4096")
                e(f"buffer_load_dwordx4 {vr(LD + (y*5+j)*4)}, v{V_L16}, {srd(S_WS)}, s11 offen sc1")
    for y in range(4):
        e(f"s_waitcnt vmcnt({15 - 5*y})")
        for j in range(5):
            for r in range(4):
                x = LD + (y * 5 + j) * 4 + r
                e(f"v_dot2c_f32_bf16 v{AC + j*8 + 2*r}, s4, v{x}")
                e(f"v_dot2c_f32_bf16 v{AC + j*8 + 2*r + 1}, s5, v{x}")
    e("s_nop 2")
    for j in range(5):
        for h2 in range(2):
            e(f"ds_write_b128 v{T+7}, {vr(AC + j*8 + h2*4)} offset:{(j*2+h2)*1024}")
    e(f"s_lshl_b32 s11, s{S_BR}, 10")
    e("s_add_u32 s11, s11, s6")
    e(f"s_lshl_b32 s12, s{S_W}, 15")
    e("s_add_u32 s12, s12, s11")
    e("s_waitcnt lgkmcnt(0)")
    e("s_barrier")

    def final_block(va, extra_off, soff):
        k = 0
        for w in range(4):
            for h2 in range(2):
                e(f"ds_read_b128 {vr(LD + k*4)}, v{va} offset:{w*10240 + h2*1024 + extra_off}")
                k += 1
        e("s_waitcnt lgkmcnt(0)")
        for i in range(8):
            h2, r = i >> 2, i & 3
            srcs = [LD + (kk * 2 + h2) * 4 + r for kk in range(4)]
            e(f"v_add_f32 v{AC+i}, v{srcs[0]}, v{srcs[1]}")
            e(f"v_add_f32 v{AC+8+i}, v{srcs[2]}, v{srcs[3]}")
        for i in range(8):
            e(f"v_add_f32 v{AC+i}, v{AC+i}, v{AC+8+i}")
        for i in range(4):
            e(f"v_cvt_pk_bf16_f32 v{AC+16+i}, v{AC+2*i}, v{AC+2*i+1}")
        e(f"buffer_store_dwordx2 v[{AC+16}:{AC+17}], v{T+5}, {srd(S_OUT)}, {soff} offen")
        e(f"buffer_store_dwordx2 v[{AC+18}:{AC+19}], v{T+5}, {srd(S_OUT)}, {soff} offen offset:32")

    final_block(T + 8, 0, "s12")
    e(f"s_cmp_lg_u32 s{S_W}, 0")
    e("s_cbranch_scc1 L_skip4")
    e(f"s_add_u32 s12, s11, {4*32768}")
    final_block(T + 8, 4 * 2048, "s12")
    g.lab("L_skip4")
    e("s_barrier")
    e(f"v_mov_b32 v{V_C0}, v{V_C0+1}")
    e(f"s_add_u32 s{S_BR}, s{S_BR}, 1")
    e(f"s_cmp_lt_u32 s{S_BR}, 2")
    e("s_cbranch_scc1 L_cons")
    g.lab("L_fin")
    if stamps:
        e("s_waitcnt vmcnt(0)")
        stamp("end")
        n = len(stamps)
        e(f"s_lshl_b32 s{S_T1}, s2, 2")
        e(f"s_add_u32 s{S_T1}, s{S_T1}, s{S_W}")
        e(f"s_mul_i32 s{S_T1}, s{S_T1}, {n*8}")
        e(f"s_add_u32 s{S_T1}, s{S_T1}, {WS_BYTES - 256*4*n*8}")
        e("s_waitcnt lgkmcnt(0)")
        e("v_mov_b32 v8, 0")
        e("s_mov_b64 exec, 1")
        for k in range(n):
            e(f"v_mov_b32 v4, s{S_STAMP+2*k}")
            e(f"v_mov_b32 v5, s{S_STAMP+2*k+1}")
            e(f"buffer_store_dwordx2 v[4:5], v8, {srd(S_WS)}, s{S_T1} offen offset:{k*8}")
            e("s_nop 1")
    g.lab("L_end")
    e("s_endpgm")
    g.raw('.section .rodata,"a"')
    g.raw(".p2align 6")
    g.raw(f".amdhsa_kernel {NAME}_kernel")
    g.raw("  .amdhsa_next_free_vgpr 512")
    g.raw("  .amdhsa_next_free_sgpr 102")
    g.raw("  .amdhsa_accum_offset 256")
    g.raw("  .amdhsa_group_segment_fixed_size 0")
    g.raw("  .amdhsa_kernarg_size 104")
    g.raw("  .amdhsa_user_sgpr_count 2")
    g.raw("  .amdhsa_user_sgpr_kernarg_segment_ptr 1")
    g.raw("  .amdhsa_system_sgpr_workgroup_id_x 1")
    g.raw("  .amdhsa_float_denorm_mode_32 3")
    g.raw(".end_amdhsa_kernel")
    return g.text()


STAMPS = ["start", "c0", "qdone", "loop", "attn", "comb", "prod", "end"]
if __name__ == "__main__":
    t = gen()
    check(t)
    open("v5.s", "w").write(t)
    open("v5_st.s", "w").write(gen(stamps=STAMPS))
    open("v5_nd_st.s", "w").write(gen(stamps=STAMPS, defer=False))
    open("v5_ns_st.s", "w").write(gen(stamps=STAMPS, spread=False))
```

```python
import sys, struct, math
from asmlib import Asm, check

NAME = "concat_heads__gqa_block_cached__mha_block_cached__near_ridge"
HDR = open("cdna_kernels/" + NAME + ".s.ref").read().split("; Override launch")[0]


def f2u(x):
    return struct.unpack("<I", struct.pack("<f", x))[0]


SCALE_C = math.log2(math.e) / math.sqrt(128.0)
THR_T = 8.0
WS_BYTES = 268435456
PART = 81920
FLAG_BASE = 32 * 1024 * 1024
XF_BASE = FLAG_BASE + 65536

S_X, S_WQ, S_K, S_V, S_WO, S_WS, S_OUT, S_DBG = 32, 36, 40, 44, 48, 52, 56, 60
S_W, S_PW, S_ISA, S_B, S_H0, S_RING, S_MISC, S_CNT, S_KOFF = 64, 65, 66, 67, 68, 69, 70, 72, 73
S_T0, S_T1, S_T2, S_T3 = 74, 75, 76, 77
S_PRING, S_PMISC, S_THRESH, S_DMIN = 78, 79, 80, 81
S_C2 = 82
S_DRING, S_P = 30, 31
S_ROT, S_X3, S_WOB, S_FLG = 3, 100, 101, 29
S_STAMP = 84
S_WOX = 24
S_PK, S_PV = 4, 8
S_HOFF, S_KDST, S_VDST, S_PFO, S_VOFF, S_KB, S_VB, S_XFO = 12, 13, 14, 15, 71, 16, 17, 18

V_OFFK = 1
V_OFFV = 5
V_L16 = 7
V_KRD = 8
V_VRD = 12
V_ONES = 20
V_OFFW = 24
V_WRD = 28
V_F0, V_FOFF, V_POFF = 36, 37, 38
V_Q = 40
V_S = 120
V_P = 136
V_VF = 144
V_NM = 208
V_T = 228
V_C0 = 244
V_XF = 246
A_O = 0
A_L = 160
A_KF = 180

RING = 32768
SLOT = 8192
MISC0 = 131072
NEG_INF = 0xff800000


def srd(n):
    return f"s[{n}:{n+3}]"


def vr(b, n=4):
    return f"v[{b}:{b+n-1}]"


def ar(b, n=4):
    return f"a[{b}:{b+n-1}]"


def gen(nt_x="nt", nt_y="", stamps=None, poll_sleep=1, warm=True, pf=0, pf_start=12, spread=True, defer=True, defer_max=400, out_pol="", ywarm=True):
    g = Asm()
    e = g.e
    g.raw(HDR.rstrip("\n"))
    g.raw("; @launch grid=(256,1,1) block=(256,1,1) lds=163840")
    g.raw('.amdgcn_target "amdgcn-amd-amdhsa--gfx950"')
    g.raw(".text")
    g.raw(f".globl {NAME}_kernel")
    g.raw(".p2align 8")
    g.raw(f".type {NAME}_kernel,@function")
    g.lab(f"{NAME}_kernel")
    stamps = stamps or []

    def stamp(name):
        if name in stamps:
            k = stamps.index(name)
            e(f"s_memrealtime s[{S_STAMP+2*k}:{S_STAMP+2*k+1}]")

    def put(x):
        if x.endswith(":"):
            g.raw(x)
        else:
            e(x)

    def interleave(M, X, start=0, end=None):
        n = len(M) if end is None else end
        k = 0
        slots = max(1, n - start)
        for i, m in enumerate(M):
            put(m)
            if start <= i < n:
                tgt = (len(X) * (i - start + 1) + slots - 1) // slots
                while k < min(tgt, len(X)):
                    put(X[k]); k += 1
        while k < len(X):
            put(X[k]); k += 1

    T = V_T
    e("s_cmp_ge_u32 s2, 256")
    e("s_cbranch_scc1 L_end")
    stamp("start")
    e("s_load_dwordx16 s[4:19], s[0:1], 0")
    e("s_load_dwordx8 s[20:27], s[0:1], 64")
    e("s_load_dwordx2 s[28:29], s[0:1], 96")
    e("v_lshrrev_b32 v1, 6, v0")
    e("v_and_b32 v0, 63, v0")
    e(f"v_readfirstlane_b32 s{S_W}, v1")
    e(f"s_and_b32 s{S_T0}, s2, 7")
    e(f"s_lshr_b32 s{S_T1}, s2, 3")
    e(f"s_and_b32 s{S_ISA}, s{S_T1}, 1")
    e(f"s_lshr_b32 s{S_B}, s{S_T1}, 2")
    e(f"s_bfe_u32 s{S_T1}, s{S_T1}, 0x10001")
    e(f"s_lshl_b32 s{S_P}, s{S_T0}, 1")
    e(f"s_add_u32 s{S_P}, s{S_P}, s{S_T1}")
    e(f"s_lshl_b32 s{S_H0}, s{S_P}, 1")
    e(f"s_lshl_b32 s{S_ROT}, s{S_T1}, 2")
    e(f"s_add_u32 s{S_ROT}, s{S_ROT}, s{S_B}")
    e(f"s_and_b32 s{S_PW}, s{S_W}, 1")
    e(f"s_lshl_b32 s{S_RING}, s{S_W}, 15")
    e(f"s_mov_b32 s{S_DRING}, s{S_RING}")
    e(f"s_xor_b32 s{S_PRING}, s{S_RING}, {RING}")
    e(f"s_lshl_b32 s{S_MISC}, s{S_W}, 13")
    e(f"s_add_u32 s{S_MISC}, s{S_MISC}, {MISC0}")
    e(f"s_xor_b32 s{S_PMISC}, s{S_MISC}, 8192")
    e(f"s_lshl_b32 s{S_T1}, s{S_B}, 5")
    e(f"s_add_u32 s{S_T1}, s{S_T1}, s{S_H0}")
    e(f"s_lshr_b32 s{S_T2}, s{S_W}, 1")
    e(f"s_add_u32 s{S_T1}, s{S_T1}, s{S_T2}")
    e(f"s_lshl_b32 s{S_T2}, s{S_B}, 3")
    e(f"s_add_u32 s{S_T2}, s{S_T2}, s{S_T0}")
    e(f"s_cmp_eq_u32 s{S_ISA}, 1")
    e(f"s_cselect_b32 s{S_T1}, s{S_T2}, s{S_T1}")
    e(f"s_lshl_b32 s{S_T1}, s{S_T1}, 18")
    e(f"s_lshl_b32 s{S_T2}, s{S_PW}, 17")
    e(f"s_add_u32 s{S_T1}, s{S_T1}, s{S_T2}")
    e(f"s_mul_i32 s{S_T2}, s{S_B}, 81920")
    e(f"s_cmp_lt_u32 s{S_W}, 2")
    e(f"s_cselect_b32 s{S_X3}, 8, 64")
    e(f"s_add_u32 s{S_X3}, s{S_X3}, s{S_W}")
    OFFWQ, OFFX, XR, WR = V_S, V_S + 2, V_S + 3, V_S + 5
    e(f"v_lshrrev_b32 v{T}, 4, v0")
    e(f"v_and_b32 v{T+1}, 15, v0")
    e(f"v_lshlrev_b32 v{V_L16}, 4, v0")
    e(f"v_lshrrev_b32 v{T+2}, 5, v0")
    e(f"v_and_b32 v{T+3}, 31, v0")
    for i in range(2):
        e(f"v_add_u32 v{T+4}, {2*i}, v{T+2}")
        e(f"v_lshlrev_b32 v{T+4}, 2, v{T+4}")
        e(f"v_xor_b32 v{T+4}, v{T+4}, v{T+3}")
        e(f"v_lshlrev_b32 v{T+4}, 4, v{T+4}")
        e(f"v_lshl_add_u32 v{OFFWQ+i}, v{T+2}, 13, v{T+4}")
    e(f"s_lshl_b32 s{S_T3}, s{S_PW}, 2")
    e(f"v_add_u32 v{T+4}, s{S_T3}, v{T}")
    e(f"v_and_b32 v{T+5}, 7, v0")
    e(f"v_xor_b32 v{T+4}, v{T+4}, v{T+5}")
    e(f"v_lshlrev_b32 v{T+4}, 4, v{T+4}")
    e(f"v_lshrrev_b32 v{T+5}, 3, v0")
    e(f"v_lshl_add_u32 v{OFFX}, v{T+5}, 10, v{T+4}")
    for i in range(4):
        e(f"v_add_u32 v{T+2}, {4*i}, v{T}")
        e(f"v_xor_b32 v{T+2}, v{T+2}, v{T+1}")
        e(f"v_lshlrev_b32 v{T+2}, 4, v{T+2}")
        e(f"v_lshl_add_u32 v{V_OFFK+i}, v{T}, 8, v{T+2}")
    for i in range(2):
        e(f"v_add_u32 v{T+2}, {4*i}, v{T}")
        e(f"v_lshlrev_b32 v{T+2}, 1, v{T+2}")
        e(f"v_xor_b32 v{T+2}, v{T+2}, v{T+1}")
        e(f"v_lshlrev_b32 v{T+2}, 4, v{T+2}")
        e(f"v_lshl_add_u32 v{V_OFFV+i}, v{T}, 8, v{T+2}")
    e("s_waitcnt lgkmcnt(0)")
    e(f"s_cmp_eq_u32 s{S_ISA}, 1")
    e(f"s_cselect_b64 s[{S_X}:{S_X+1}], s[4:5], s[14:15]")
    e(f"s_cselect_b64 s[{S_WQ}:{S_WQ+1}], s[10:11], s[20:21]")
    e(f"s_cselect_b64 s[{S_K}:{S_K+1}], s[6:7], s[16:17]")
    e(f"s_cselect_b64 s[{S_V}:{S_V+1}], s[8:9], s[18:19]")
    e(f"s_cselect_b64 s[{S_WO}:{S_WO+1}], s[12:13], s[22:23]")
    e(f"s_add_u32 s{S_X}, s{S_X}, s{S_T2}")
    e(f"s_addc_u32 s{S_X+1}, s{S_X+1}, 0")
    e(f"s_add_u32 s{S_K}, s{S_K}, s{S_T1}")
    e(f"s_addc_u32 s{S_K+1}, s{S_K+1}, 0")
    e(f"s_add_u32 s{S_V}, s{S_V}, s{S_T1}")
    e(f"s_addc_u32 s{S_V+1}, s{S_V+1}, 0")
    e(f"s_mov_b32 s{S_X+2}, 81920")
    e(f"s_mov_b32 s{S_WQ+2}, 4194304")
    e(f"s_mov_b32 s{S_K+2}, 131072")
    e(f"s_mov_b32 s{S_V+2}, 131072")
    e(f"s_mov_b32 s{S_WO+2}, 4194304")
    e(f"s_mov_b32 s{S_WS}, s28")
    e(f"s_mov_b32 s{S_WS+1}, s29")
    e(f"s_mov_b32 s{S_WS+2}, {WS_BYTES}")
    e(f"s_mov_b32 s{S_OUT}, s24")
    e(f"s_mov_b32 s{S_OUT+1}, s25")
    e(f"s_mov_b32 s{S_OUT+2}, 1310720")
    e(f"s_mov_b32 s{S_DBG}, s26")
    e(f"s_mov_b32 s{S_DBG+1}, s27")
    e(f"s_mov_b32 s{S_DBG+2}, 256")
    for s_ in (S_X, S_WQ, S_K, S_V, S_WO, S_WS, S_OUT, S_DBG):
        e(f"s_mov_b32 s{s_+3}, 0x20000")

    e(f"s_lshl_b32 s{S_T3}, s{S_B}, 5")
    e(f"s_add_u32 s{S_T3}, s{S_T3}, s{S_H0}")
    e(f"s_lshl_b32 s{S_T3}, s{S_T3}, 18")
    e(f"s_add_u32 s{S_PK}, s16, s{S_T3}")
    e(f"s_addc_u32 s{S_PK+1}, s17, 0")
    e(f"s_add_u32 s{S_PV}, s18, s{S_T3}")
    e(f"s_addc_u32 s{S_PV+1}, s19, 0")
    e(f"s_mov_b32 s{S_PK+2}, 524288")
    e(f"s_mov_b32 s{S_PV+2}, 524288")
    e(f"s_mov_b32 s{S_PK+3}, 0x20000")
    e(f"s_mov_b32 s{S_PV+3}, 0x20000")
    e(f"s_mov_b32 s{S_WOX}, s22")
    e(f"s_mov_b32 s{S_WOX+1}, s23")
    e(f"s_mov_b32 s{S_WOX+2}, 4194304")
    e(f"s_mov_b32 s{S_WOX+3}, 0x20000")
    e(f"s_lshr_b32 s{S_HOFF}, s{S_W}, 1")
    e(f"s_lshl_b32 s{S_HOFF}, s{S_HOFF}, 12")
    e(f"s_lshl_b32 s{S_KB}, s{S_PW}, 15")
    e(f"s_add_u32 s{S_VB}, s{S_KB}, 0x10000")
    e(f"s_add_u32 s{S_KDST}, s{S_KB}, s{S_HOFF}")
    e(f"s_add_u32 s{S_VDST}, s{S_VB}, s{S_HOFF}")
    e(f"s_lshl_b32 s{S_PFO}, s{S_W}, 17")
    e(f"s_add_u32 s{S_PFO}, s{S_PFO}, {pf_start*8192}")
    e(f"s_cmp_eq_u32 s{S_ISA}, 1")
    e(f"s_cselect_b32 s{S_KB}, s{S_KB}, s{S_RING}")
    e(f"s_cselect_b32 s{S_VB}, s{S_VB}, s{S_RING}")

    q = []
    done = [-1]
    rolecnt = [0]

    def by_role(xl, yl, eq=True):
        nx = sum(1 for l in xl if l.startswith("buffer_"))
        ny = sum(1 for l in yl if l.startswith("buffer_"))
        assert nx == ny or not eq, (nx, ny)
        k = rolecnt[0]
        rolecnt[0] += 1
        return ([f"s_cmp_eq_u32 s{S_ISA}, 1", f"s_cbranch_scc1 L_ry{k}"] + xl + [f"s_branch L_re{k}", f"L_ry{k}:"] + yl + [f"L_re{k}:"])

    def dma_half(which, slot, goff_imm=None, nt=""):
        s_ = S_K if which == "K" else S_V
        dst = S_KDST if which == "K" else S_VDST
        so = S_KOFF if which == "K" else S_VOFF
        out = [f"s_add_u32 m0, s{dst}, {slot*SLOT}"]
        if goff_imm is not None:
            out.append(f"s_add_u32 s{S_T3}, s{S_HOFF}, {goff_imm}")
            so = S_T3
        else:
            out.append("s_nop 0")
        for i in range(4):
            vo = V_OFFK + i if which == "K" else V_OFFV + (i & 1)
            out.append(f"buffer_load_dwordx4 v{vo}, {srd(s_)}, s{so} offen offset:{i*1024} {nt} lds")
        return out

    def warm_loads(cs, sr=S_WO):
        out = [f"s_lshl_b32 s{S_CNT}, s{S_B}, 12", f"s_add_u32 s{S_CNT}, s{S_CNT}, s{S_WOB}"]
        for c in cs:
            out.append(f"s_add_u32 s{S_T3}, s{S_CNT}, {c*32768}")
            out.append(f"buffer_load_dwordx4 v[248:251], v{V_OFFW}, {srd(sr)}, s{S_T3} offen")
        return out

    def helper(n):
        out = []
        for i in range(n):
            out.append(f"buffer_load_dwordx4 v[248:251], v{V_L16}, {srd(S_PK)}, s{S_PFO} offen offset:{i*1024}")
            out.append(f"buffer_load_dwordx4 v[252:255], v{V_L16}, {srd(S_PV)}, s{S_PFO} offen offset:{i*1024}")
        out.append(f"s_add_u32 s{S_PFO}, s{S_PFO}, {n*1024}")
        return out

    def issue(tag, n=1):
        q.extend([tag] * n)

    def wait_str(tag):
        last = max(i for i, t in enumerate(q) if t == tag)
        n = len(q) - 1 - last
        if last <= done[0]:
            return None
        done[0] = last
        assert n <= 63, n
        return f"s_waitcnt vmcnt({n})"

    def wait_tag(tag):
        w = wait_str(tag)
        if w:
            e(w)

    def dma_kv(which, slot, goff_imm=None, nt=""):
        s_ = S_K if which == "K" else S_V
        out = []
        for half in range(2):
            out.append(f"s_add_u32 m0, s{S_DRING}, {slot*SLOT + half*4096}")
            if goff_imm is not None:
                out.append(f"s_mov_b32 s{S_T3}, {goff_imm + half*4096}")
            else:
                out.append(f"s_add_u32 s{S_T3}, s{S_KOFF}, {half*4096}")
            for i in range(4):
                vo = V_OFFK + i if which == "K" else V_OFFV + (i & 1)
                out.append(f"buffer_load_dwordx4 v{vo}, {srd(s_)}, s{S_T3} offen offset:{i*1024} {nt} lds")
        return out

    def wo_chunk(c, base_sreg, off):
        out = []
        for half in range(2):
            out.append(f"s_add_u32 m0, s{base_sreg}, {off + half*4096}")
            out.append(f"s_add_u32 s{S_T3}, s{S_WOB}, {c*32768 + half*16384}")
            for i in range(4):
                out.append(f"buffer_load_dwordx4 v{V_OFFW+i}, {srd(S_WO)}, s{S_T3} offen offset:{i*1024} lds")
        return out

    S_WC = S_T0
    e(f"s_lshl_b32 s{S_WC}, s{S_W}, 17")
    e(f"s_lshl_b32 s{S_T1}, s{S_H0}, 8")
    e(f"s_add_u32 s{S_WC}, s{S_WC}, s{S_T1}")
    S_KC = S_T1
    S_XW = S_T2
    e(f"s_lshl_b32 s{S_XW}, s{S_W}, 13")

    def wslot(n):
        return 1 + ((n + 1) % 3)

    def chunk(n):
        out = []
        out.append(f"s_add_u32 s{S_KC}, s{S_ROT}, {n}")
        out.append(f"s_and_b32 s{S_KC}, s{S_KC}, 7")
        out.append(f"s_lshl_b32 s{S_CNT}, s{S_KC}, 19")
        out.append(f"s_add_u32 s{S_CNT}, s{S_CNT}, s{S_WC}")
        for i in range(8):
            out.append(f"s_add_u32 m0, s{S_RING}, {wslot(n)*SLOT + i*1024}")
            out.append(f"s_add_u32 s{S_T3}, s{S_CNT}, {i*16384}")
            out.append(f"buffer_load_dwordx4 v{OFFWQ + (i&1)}, {srd(S_WQ)}, s{S_T3} offen lds")
        out.append(f"s_lshl_b32 s{S_KC}, s{S_KC}, 7")
        xb = MISC0 + (n % 3) * 10240
        for k in range(3):
            if k < 2:
                out.append(f"s_lshl_b32 s{S_CNT}, s{S_W}, 10")
                out.append(f"s_add_u32 m0, s{S_CNT}, {xb + k*4096}")
                out.append(f"s_add_u32 s{S_T3}, s{S_XW}, {k*32768}")
            else:
                out.append(f"s_lshl_b32 s{S_CNT}, s{S_X3}, 10")
                out.append(f"s_add_u32 m0, s{S_CNT}, {xb}")
                out.append(f"s_lshl_b32 s{S_T3}, s{S_X3}, 13")
            out.append(f"s_add_u32 s{S_T3}, s{S_T3}, s{S_KC}")
            out.append(f"buffer_load_dwordx4 v{OFFX}, {srd(S_X)}, s{S_T3} offen lds")
        return out

    stamp("pre")
    for n in range(3):
        for l in chunk(n):
            e(l)
        issue(f"C{n}", 11)
    for l in by_role(dma_kv("K", 0, goff_imm=0), dma_half("K", 0, goff_imm=0) + dma_half("V", 0, goff_imm=0)):
        put(l)
    issue("K0", 8)
    stamp("issued")
    e(f"s_xor_b32 s{S_FLG}, s{S_ISA}, 1")
    e(f"s_lshl_b32 s{S_FLG}, s{S_FLG}, 3")
    e(f"s_add_u32 s{S_FLG}, s{S_FLG}, s{S_B}")
    e(f"s_lshl_b32 s{S_FLG}, s{S_FLG}, 2")
    e(f"s_add_u32 s{S_FLG}, s{S_FLG}, s{S_W}")
    e(f"s_lshl_b32 s{S_FLG}, s{S_FLG}, 8")
    e(f"s_lshl_b32 s{S_T3}, s{S_P}, 2")
    e(f"s_add_u32 s{S_FLG}, s{S_FLG}, s{S_T3}")
    e(f"s_add_u32 s{S_FLG}, s{S_FLG}, {FLAG_BASE}")
    e(f"v_and_b32 v{T+2}, 3, v0")
    e(f"v_lshlrev_b32 v{V_FOFF}, 6, v{T+2}")
    e(f"buffer_load_dword v{V_F0}, v{V_FOFF}, {srd(S_WS)}, s{S_FLG} offen sc1")
    e(f"v_lshlrev_b32 v{T+2}, 2, v{T+2}")
    e(f"s_lshl_b32 s{S_T3}, s{S_W}, 4")
    e(f"v_add_u32 v{V_POFF}, s{S_T3}, v{T+2}")
    e(f"s_lshl_b32 s{S_T3}, s{S_B}, 4")
    e(f"s_add_u32 s{S_T3}, s{S_T3}, s{S_P}")
    e(f"s_lshl_b32 s{S_T3}, s{S_T3}, 6")
    e(f"s_add_u32 s{S_T3}, s{S_T3}, {FLAG_BASE}")
    e(f"buffer_load_dword v{V_C0}, v{V_POFF}, {srd(S_WS)}, s{S_T3} offen sc1")
    e(f"s_add_u32 s{S_T3}, s{S_T3}, 8192")
    e(f"buffer_load_dword v{V_C0+1}, v{V_POFF}, {srd(S_WS)}, s{S_T3} offen sc1")
    e(f"s_lshl_b32 s{S_XFO}, s{S_B}, 4")
    e(f"s_add_u32 s{S_XFO}, s{S_XFO}, s{S_P}")
    e(f"s_lshl_b32 s{S_XFO}, s{S_XFO}, 6")
    e(f"s_add_u32 s{S_XFO}, s{S_XFO}, {XF_BASE}")
    e(f"v_mov_b32 v{V_XF+1}, 0")
    e(f"buffer_load_dword v{V_XF}, v{V_XF+1}, {srd(S_WS)}, s{S_XFO} offen sc1")
    issue("FR", 4)
    for i in range(4):
        e(f"v_add_u32 v{T+2}, {4*(i&1)}, v{T}")
        e(f"v_lshlrev_b32 v{T+2}, 1, v{T+2}")
        e(f"v_xor_b32 v{T+2}, v{T+2}, v{T+1}")
        e(f"v_lshlrev_b32 v{T+2}, 4, v{T+2}")
        e(f"v_lshl_add_u32 v{V_OFFW+i}, v{T}, 10, v{T+2}")
        if i:
            e(f"v_add_u32 v{V_OFFW+i}, {3072*i}, v{V_OFFW+i}")
    e(f"v_xor_b32 v{T+2}, v{T}, v{T+1}")
    e(f"s_lshl_b32 s{S_T3}, s{S_PW}, 3")
    e(f"v_xor_b32 v{T+2}, s{S_T3}, v{T+2}")
    e(f"v_lshlrev_b32 v{T+3}, 8, v{T+1}")
    e(f"v_add_u32 v{T+3}, s{S_KB}, v{T+3}")
    for s in range(4):
        e(f"v_xor_b32 v{T+4}, {4*s}, v{T+2}")
        e(f"v_lshl_add_u32 v{V_KRD+s}, v{T+4}, 4, v{T+3}")
    e(f"v_lshrrev_b32 v{T+2}, 2, v0")
    e(f"v_lshlrev_b32 v{T+3}, 8, v{T+2}")
    e(f"v_add_u32 v{T+3}, s{S_RING}, v{T+3}")
    e(f"v_bfe_u32 v{T+4}, v0, 1, 1")
    e(f"v_lshl_add_u32 v{T+3}, v{T+4}, 4, v{T+3}")
    e(f"v_and_b32 v{T+4}, 1, v0")
    e(f"v_lshl_add_u32 v{T+3}, v{T+4}, 3, v{T+3}")
    e(f"v_and_b32 v{T+2}, 7, v{T+2}")
    e(f"v_lshlrev_b32 v{T+2}, 1, v{T+2}")
    for t in range(8):
        e(f"v_xor_b32 v{T+4}, {2*t}, v{T+2}")
        e(f"v_lshl_add_u32 v{V_WRD+t}, v{T+4}, 4, v{T+3}")
    e(f"v_xor_b32 v{T+2}, s{S_T3}, v{T+2}")
    e(f"s_sub_u32 s{S_CNT}, s{S_VB}, s{S_RING}")
    e(f"v_add_u32 v{T+3}, s{S_CNT}, v{T+3}")
    for t in range(8):
        e(f"v_xor_b32 v{T+4}, {2*t}, v{T+2}")
        e(f"v_lshl_add_u32 v{V_VRD+t}, v{T+4}, 4, v{T+3}")
    e(f"v_lshrrev_b32 v{T+2}, 1, v{T+1}")
    e(f"v_xor_b32 v{T+2}, v{T+2}, v{T}")
    e(f"v_lshlrev_b32 v{T+3}, 7, v{T+1}")
    e(f"v_add_u32 v{T+3}, {MISC0}, v{T+3}")
    e(f"v_lshl_add_u32 v{XR}, v{T+2}, 4, v{T+3}")
    e(f"v_xor_b32 v{T+2}, 4, v{T+2}")
    e(f"v_lshl_add_u32 v{XR+1}, v{T+2}, 4, v{T+3}")
    e(f"v_bfe_u32 v{T+2}, v0, 2, 2")
    e(f"v_bfe_u32 v{T+3}, v0, 4, 1")
    e(f"v_lshl_add_u32 v{T+3}, v{T+3}, 3, v{T+2}")
    e(f"v_lshlrev_b32 v{T+3}, 9, v{T+3}")
    e(f"v_lshrrev_b32 v{T+4}, 5, v0")
    e(f"v_lshl_add_u32 v{T+3}, v{T+4}, 15, v{T+3}")
    e(f"v_and_b32 v{T+4}, 3, v0")
    e(f"s_lshl_b32 s{S_T3}, s{S_W}, 3")
    e(f"v_add_u32 v{T+4}, s{S_T3}, v{T+4}")
    e(f"v_lshlrev_b32 v{T+2}, 2, v{T+2}")
    e(f"v_xor_b32 v{T+4}, v{T+4}, v{T+2}")
    e(f"v_lshl_add_u32 v{WR}, v{T+4}, 4, v{T+3}")
    e(f"v_xor_b32 v{T+4}, 4, v{T+4}")
    e(f"v_lshl_add_u32 v{WR+1}, v{T+4}, 4, v{T+3}")
    e(f"v_add_u32 v{WR+2}, 0x10000, v{WR}")
    e(f"v_add_u32 v{WR+3}, 0x10000, v{WR+1}")
    for i in range(4):
        e(f"v_mov_b32 v{V_ONES+i}, 0x3f803f80")
    for i in range(20):
        e(f"v_mov_b32 v{V_NM+i}, 0")
    for i in range(32):
        e(f"v_mov_b32 v{V_VF+32+i}, 0")
    for i in range(8):
        e(f"v_mov_b32 v{V_P+i}, 0")
    for i in range(144, 180):
        e(f"v_accvgpr_write_b32 a{i}, 0")
    e(f"s_mov_b32 s{S_C2}, {f2u(SCALE_C):#x}")
    e(f"s_mov_b32 s{S_C2+1}, {f2u(SCALE_C):#x}")
    e(f"s_mov_b32 s{S_THRESH}, {NEG_INF:#x}")
    e(f"s_mov_b32 s{S_DMIN}, {NEG_INF:#x}")
    e(f"s_lshl_b32 s{S_WOB}, s{S_H0}, 17")
    e(f"s_lshl_b32 s{S_T3}, s{S_W}, 8")
    e(f"s_add_u32 s{S_WOB}, s{S_WOB}, s{S_T3}")

    def kslot(par):
        return 2 * (par ^ 1)

    def k_reads(par, slot=None):
        if slot is None:
            slot = kslot(par)
        out = []
        for kt in range(2):
            for s in range(4):
                d = A_KF + par * 32 + (kt * 4 + s) * 4
                out.append(f"ds_read_b128 {ar(d)}, v{V_KRD+s} offset:{slot*SLOT + kt*4096}")
        return out

    def v_reads(par, slot=None):
        if slot is None:
            slot = kslot(par) + 1
        out = []
        for t in range(8):
            for hf in range(2):
                d = V_VF + par * 32 + t * 4 + hf * 2
                out.append(f"ds_read_b64_tr_b16 v[{d}:{d+1}], v{V_VRD+t} offset:{slot*SLOT + hf*4096}")
        return out

    A_XF = 0
    A_WF = 80
    QACC = V_Q

    def qreads(n):
        out = []
        xb = (n % 3) * 10240
        xf = A_XF + (n & 1) * 40
        wf = A_WF + (n & 1) * 32
        for ks in range(2):
            for tp in range(4):
                sp, par = tp >> 1, tp & 1
                for hf in range(2):
                    off = wslot(n) * SLOT + hf * 2048 + 8 * par
                    d = wf + (ks * 4 + tp) * 4 + hf * 2
                    out.append(f"ds_read_b64_tr_b16 a[{d}:{d+1}], v{WR + ks*2 + sp} offset:{off}")
            for j in range(5):
                d = xf + (ks * 5 + j) * 4
                out.append(f"ds_read_b128 {ar(d)}, v{XR+ks} offset:{xb + j*2048}")
        return out

    def qmfma(n):
        out = []
        xf = A_XF + (n & 1) * 40
        wf = A_WF + (n & 1) * 32
        for ks in range(2):
            for j in range(5):
                for tp in range(4):
                    d = QACC + (tp * 5 + j) * 4
                    cc = "0" if (n == 0 and ks == 0) else vr(d)
                    out.append(f"v_mfma_f32_16x16x32_bf16 {vr(d)}, {ar(wf + (ks*4+tp)*4)}, {ar(xf + (ks*5+j)*4)}, {cc}")
        return out

    def refill(n):
        out = []
        if n == 2:
            out.append((by_role(dma_kv("V", 0, goff_imm=0), warm_loads(range(8))), "V0", 8))
        if n + 3 < 8:
            out.append((chunk(n + 3), f"C{n+3}", 11))
        if n == 5:
            out.append((by_role(dma_kv("K", 0, goff_imm=8192) + dma_kv("V", 1, goff_imm=8192),
                                dma_half("K", 1, goff_imm=8192) + dma_half("V", 1, goff_imm=8192) + dma_half("K", 0, goff_imm=2 * 8192) + warm_loads((4, 0, 1, 2), S_WOX)), "K1", 16))
        if n == 6:
            out.append((by_role(dma_kv("K", 2, goff_imm=2 * 8192), wo_chunk(0, S_RING, 2 * SLOT)), "K2", 8))
        return out

    wait_tag("C0")
    stamp("c0")
    e("s_barrier")
    for l in qreads(0):
        e(l)
    e("s_waitcnt lgkmcnt(0)")
    e("s_barrier")
    for r, tag, cnt in refill(0):
        for l in r:
            put(l)
        issue(tag, cnt)
    for n in range(8):
        M = qmfma(n)
        if n + 1 < 8:
            wait_tag(f"C{n+1}")
            R = qreads(n + 1)
            if n + 1 == 2:
                wait_tag("K0")
                R = R + k_reads(0, slot=0)
            if n + 1 == 5:
                wait_tag("V0")
                R = R + v_reads(0, slot=0)
            stamp(f"c{n+1}")
            e("s_barrier")
            interleave(M[:20], R)
            e("s_waitcnt lgkmcnt(0)")
            e("s_barrier")
            rr = refill(n + 1)
            plain = [l for x in rr if not x[0][0].startswith("s_cmp_eq") for l in x[0]]
            first = True
            for x in rr:
                if x[0][0].startswith("s_cmp_eq"):
                    for l in x[0]:
                        put(l)
            interleave(M[20:], plain)
            for _, tag, cnt in rr:
                issue(tag, cnt)
        else:
            Z = [f"v_accvgpr_write_b32 a{i}, 0" for i in list(range(0, 40)) + list(range(80, 112))]
            interleave(M, Z)
    stamp("qdone")
    for i in list(range(40, 80)) + list(range(112, 144)):
        e(f"v_accvgpr_write_b32 a{i}, 0")
    e(f"v_add_u32 v{T}, s{S_RING}, v{V_L16}")
    e(f"v_add_u32 v{T+1}, s{S_MISC}, v{V_L16}")
    e(f"v_add_u32 v{T+2}, s{S_PRING}, v{V_L16}")
    e(f"v_add_u32 v{T+3}, s{S_PMISC}, v{V_L16}")
    for sp in range(2):
        for j in range(5):
            qd = V_Q + (sp * 5 + j) * 4
            for par in range(2):
                a = QACC + ((2 * sp + par) * 5 + j) * 4
                e(f"v_pk_mul_f32 v[{a}:{a+1}], v[{a}:{a+1}], s[{S_C2}:{S_C2+1}]")
                e(f"v_pk_mul_f32 v[{a+2}:{a+3}], v[{a+2}:{a+3}], s[{S_C2}:{S_C2+1}]")
                e(f"v_cvt_pk_bf16_f32 v{qd+2*par}, v{a}, v{a+1}")
                e(f"v_cvt_pk_bf16_f32 v{qd+2*par+1}, v{a+2}, v{a+3}")
            f = sp * 5 + j
            if f < 8:
                e(f"ds_write_b128 v{T}, {vr(V_Q + f*4)} offset:{3*SLOT + f*1024}")
            else:
                e(f"ds_write_b128 v{T+1}, {vr(V_Q + f*4)} offset:{(f-8)*1024}")
    e("s_waitcnt lgkmcnt(0)")
    e("s_barrier")
    for f in range(10):
        if f < 8:
            e(f"ds_read_b128 {vr(V_Q + 40 + f*4)}, v{T+2} offset:{3*SLOT + f*1024}")
        else:
            e(f"ds_read_b128 {vr(V_Q + 40 + f*4)}, v{T+3} offset:{(f-8)*1024}")
    e("s_waitcnt lgkmcnt(0)")
    e("s_barrier")
    for l in wo_chunk(4, S_MISC, 0):
        e(l)
    if spread:
        xl = dma_kv("V", 3, goff_imm=2 * 8192)[0:3]
        if not ywarm:
            xl = warm_loads((0, 1, 2, 3, 5, 6, 7)) + xl
        yl = wo_chunk(1, S_RING, 3 * SLOT) + warm_loads((3, 5, 6, 7), S_WOX)
    else:
        xl = dma_kv("V", 3, goff_imm=2 * 8192) + warm_loads((0, 1, 2, 3, 5, 6, 7))
        yl = wo_chunk(1, S_RING, 3 * SLOT) + warm_loads((2, 3, 5, 6, 7, 5, 6))
    for l in by_role(xl, yl, eq=False):
        put(l)
    e(f"s_mov_b32 s{S_KOFF}, {3*8192}")
    e(f"s_add_u32 s{S_VOFF}, s{S_HOFF}, {2*8192}")
    e(f"s_mov_b32 s{S_CNT}, 0")

    def qk(par, j, sb):
        out = []
        for kt in range(2):
            d = V_S + sb * 8 + kt * 4
            for s in range(4):
                cc = vr(V_NM + j * 4) if s == 0 else vr(d)
                out.append(f"v_mfma_f32_16x16x32_bf16 {vr(d)}, {ar(A_KF + par*32 + (kt*4+s)*4)}, {vr(V_Q + (s*5+j)*4)}, {cc}")
        return out

    def pv(par, j, pb):
        out = []
        for t in range(8):
            d = A_O + (t * 5 + j) * 4
            out.append(f"v_mfma_f32_16x16x32_bf16 {ar(d)}, {vr(V_VF + par*32 + t*4)}, {vr(V_P + pb*4)}, {ar(d)}")
        d = A_L + j * 4
        out.append(f"v_mfma_f32_16x16x32_bf16 {ar(d)}, {vr(V_ONES)}, {vr(V_P + pb*4)}, {ar(d)}")
        return out

    stamp("loop")
    for l in qk(0, 0, 0):
        e(l)
    e(f"s_cmp_eq_u32 s{S_ISA}, 1")
    e("s_nop 5")
    e("s_cbranch_scc0 L_preX")
    e(f"s_add_u32 s{S_KOFF}, s{S_KOFF}, s{S_HOFF}")
    e("s_branch L_loopY")

    SPREAD = [(0, 5, "V", 1), (0, 8, "V", 2), (0, 11, "V", 3), (0, 15, "V", 4),
              (1, 6, "V", 5), (1, 10, "V", 6), (1, 14, "V", 7),
              (2, 5, "K", 0), (2, 9, "K", 1), (2, 15, "K", 2),
              (3, 5, "K", 3), (3, 10, "K", 4), (3, 15, "K", 5),
              (4, 5, "K", 6), (4, 9, "K", 7), (4, 15, "V", 0)]
    seq = []
    marks = {}
    for it in range(6):
        for stp in range(5):
            if stp == 1:
                marks[("K", it)] = len(seq)
            if stp == 3:
                marks[("V", it)] = len(seq)
            for (st_, pos, which, idx) in sorted([x for x in SPREAD if x[0] == stp], key=lambda x: x[1]):
                tile = it + 3 if (which == "K" or st_ == 4) else it + 2
                seq.append((which, tile))
    it = 4
    lastK = max(i for i, x in enumerate(seq) if x == ("K", it + 1))
    lastV = max(i for i, x in enumerate(seq) if x == ("V", it + 1))
    NK = marks[("K", it)] - 1 - lastK
    NV = marks[("V", it)] - 1 - lastV
    print("spread waits", NK, NV)

    def main_loop(R, nt):
        slow_blocks = []

        def sm(j, sb, uid):
            s = V_S + sb * 8
            p = V_P + sb * 4
            t0, t1 = V_T, V_T + 1
            ex = [f"v_exp_f32 v{s+i}, v{s+i}" for i in range(8)]
            cv = [f"v_cvt_pk_bf16_f32 v{p+i}, v{s+2*i}, v{s+2*i+1}" for i in range(4)]
            G = [[f"v_max3_f32 v{t0}, v{s}, v{s+1}, v{s+2}", f"v_max3_f32 v{t1}, v{s+3}, v{s+4}, v{s+5}"],
                 [f"v_max3_f32 v{t0}, v{t0}, v{s+6}, v{s+7}", f"v_max_f32 v{t0}, v{t0}, v{t1}"],
                 [f"v_cmp_lt_f32 vcc, s{S_THRESH}, v{t0}", f"s_cbranch_vccnz L_slow{R}{uid}", f"L_ret{R}{uid}:"],
                 [ex[0]], [ex[1]], [], [ex[2]], [ex[3]], [cv[0]], [ex[4]], [ex[5]], [cv[1]], [ex[6]], [ex[7]], [cv[2]], [], [cv[3]]]
            slow_blocks.append((uid, j, sb))
            return G

        g.lab(f"L_loop{R}")
        hooks = []
        for par in range(2):
            for j in range(5):
                u = par * 5 + j
                sb = u & 1
                mq = qk(par, j + 1, sb ^ 1) if j < 4 else qk(par ^ 1, 0, sb ^ 1)
                mp = pv(par, j - 1, sb ^ 1) if j > 0 else pv(par ^ 1, 4, sb ^ 1)
                M = mq + mp
                G = sm(j, sb, u)
                extra = [[] for _ in range(17)]

                def place_dma(d):
                    extra[5] += d[0:3]
                    extra[8] += [d[3]]
                    extra[9] += [d[4]]
                    extra[11] += [d[5]]
                    extra[12] += d[6:8]
                    extra[13] += [d[8]]
                    extra[14] += [d[9]]
                    extra[15] += [d[10]]
                    extra[16] += [d[11]]

                def hook(c, slot, cnt):
                    nm = f"L_hk{R}{c}"
                    extra[3] += [f"s_cmp_eq_u32 s{S_CNT}, {cnt}", f"s_cbranch_scc1 {nm}", f"{nm}_ret:"]
                    hooks.append((nm, c, slot))

                if par == 1 and j == 0:
                    extra[0] += [f"s_mov_b32 s{S_THRESH}, {f2u(THR_T):#x}", f"s_mov_b32 s{S_DMIN}, 0"]
                if R == "X" and not spread:
                    if j == 1:
                        extra[0] = ["s_waitcnt vmcnt(24)"]
                        r = k_reads(par ^ 1)
                        for i, pos in enumerate((5, 5, 8, 8, 11, 11, 15, 15)):
                            extra[pos].append(r[i])
                    if j == 2:
                        extra[0] = ["s_waitcnt lgkmcnt(0)"]
                        if par == 1:
                            hook(0, 2, 6)
                        else:
                            hook(2, 0, 7)
                        place_dma(dma_kv("K", kslot(par ^ 1), nt=nt))
                    if j == 3:
                        extra[0] = ["s_waitcnt vmcnt(24)"]
                        r = v_reads(par ^ 1)
                        for i in range(16):
                            extra[1 + i].append(r[i])
                    if j == 4:
                        extra[0] = ["s_waitcnt lgkmcnt(0)"]
                        if par == 1:
                            hook(1, 3, 6)
                        else:
                            hook(3, 1, 7)
                        place_dma(dma_kv("V", kslot(par ^ 1) + 1, nt=nt))
                        extra[16] += [f"s_add_u32 s{S_KOFF}, s{S_KOFF}, 8192"]
                elif R == "X":
                    for (st_, pos, which, idx) in SPREAD:
                        if st_ != j:
                            continue
                        if which == "K":
                            slot = kslot(par ^ 1)
                            so = S_KOFF
                        else:
                            late = (st_ < 4)
                            slot = (kslot(par) + 1) if late else (kslot(par ^ 1) + 1)
                            so = S_VOFF
                        half, i = idx >> 2, idx & 3
                        s_ = S_K if which == "K" else S_V
                        vo = V_OFFK + i if which == "K" else V_OFFV + (i & 1)
                        pre = [f"s_add_u32 m0, s{S_DRING}, {slot*SLOT + half*4096}"]
                        if half:
                            pre.append(f"s_add_u32 s{S_T3}, s{so}, 4096")
                            sreg = S_T3
                        else:
                            sreg = so
                        extra[pos - 1] += pre
                        extra[pos] += [f"buffer_load_dwordx4 v{vo}, {srd(s_)}, s{sreg} offen offset:{i*1024} {nt} lds"]
                        if which == "K" and idx == 7:
                            extra[pos] += [f"s_add_u32 s{S_KOFF}, s{S_KOFF}, 8192"]
                        if which == "V" and idx == 7:
                            extra[pos] += [f"s_add_u32 s{S_VOFF}, s{S_VOFF}, 8192"]
                    if j == 1:
                        extra[0] = [f"s_waitcnt vmcnt({NK})"] + extra[0]
                        r = k_reads(par ^ 1)
                        for i, pos in enumerate((5, 5, 8, 8, 11, 11, 15, 15)):
                            extra[pos].append(r[i])
                    if j == 2:
                        extra[0] = ["s_waitcnt lgkmcnt(0)"] + extra[0]
                        if par == 1:
                            hook(0, 2, 6)
                        else:
                            hook(2, 0, 7)
                    if j == 3:
                        extra[0] = [f"s_waitcnt vmcnt({NV})"] + extra[0]
                        r = v_reads(par ^ 1)
                        for i in range(16):
                            extra[1 + i].append(r[i])
                    if j == 4:
                        extra[0] = ["s_waitcnt lgkmcnt(0)"] + extra[0]
                        if par == 1:
                            hook(1, 3, 6)
                        else:
                            hook(3, 1, 7)
                else:
                    if j == 1:
                        extra[0] = [f"s_waitcnt vmcnt({8 + 4*pf})", "s_barrier"]
                        r = k_reads(par ^ 1, slot=par ^ 1)
                        for i, pos in enumerate((1, 1, 5, 5, 8, 8, 11, 11)):
                            extra[pos].append(r[i])
                        if par == 1:
                            extra[3] += [f"s_cmp_eq_u32 s{S_CNT}, 7", "s_cbranch_scc1 L_hkYW", "L_hkYW_ret:"]
                        d = dma_half("V", par, nt=nt)
                        extra[12] += d[0:3]
                        extra[14] += [d[3]]
                        extra[15] += [d[4]]
                        extra[16] += [d[5], f"s_add_u32 s{S_VOFF}, s{S_VOFF}, 8192"]
                    if j == 2:
                        extra[12] += ["s_waitcnt lgkmcnt(0)"]
                    if j == 3:
                        extra[0] = [f"s_waitcnt vmcnt({8 + 2*pf})", "s_barrier"]
                        r = v_reads(par ^ 1, slot=par ^ 1)
                        for i in range(16):
                            extra[1 + i].append(r[i])
                    if j == 4:
                        if par == 1:
                            extra[1] += [f"s_cmp_eq_u32 s{S_CNT}, 6", "s_cbranch_scc1 L_hkYD", "L_hkYD_ret:"]
                        d = dma_half("K", par ^ 1, nt=nt)
                        extra[3] += d[0:3]
                        extra[5] += [d[3]]
                        extra[6] += [d[4]]
                        extra[8] += [d[5], f"s_add_u32 s{S_KOFF}, s{S_KOFF}, 8192"]
                        if pf:
                            h = helper(pf)
                            for i, l in enumerate(h):
                                extra[min(16, 9 + i)].append(l)
                        extra[16] += ["s_waitcnt lgkmcnt(0)"]
                g.c(f"---- {R} step par={par} j={j}")
                for i in range(17):
                    if i == 0:
                        for x in extra[0]:
                            put(x)
                    e(M[i])
                    for x in G[i]:
                        put(x)
                    if i > 0:
                        for x in extra[i]:
                            put(x)
        e(f"s_add_u32 s{S_CNT}, s{S_CNT}, 1")
        e(f"s_cmp_lt_u32 s{S_CNT}, 8")
        e(f"s_cbranch_scc1 L_loop{R}")
        if R == "X" and defer:
            e(f"s_cmp_lg_u32 s{S_W}, 0")
            e("s_cbranch_scc1 L_epi")
            e(f"v_add_u32 v{V_XF}, 1, v{V_XF}")
            e("s_mov_b64 exec, 1")
            e(f"buffer_store_dword v{V_XF}, v{V_XF+1}, {srd(S_WS)}, s{S_XFO} offen sc1")
            e("s_mov_b64 exec, -1")
        if R == "Y":
            e(f"s_waitcnt vmcnt({8 + 2*pf})")
        e("s_branch L_epi")
        if R == "Y":
            g.lab("L_hkYD")
            e(f"s_mov_b32 s{S_K+2}, 0")
            e(f"s_mov_b32 s{S_V+2}, 0")
            e(f"s_mov_b32 s{S_KDST}, 0x30000")
            e(f"s_mov_b32 s{S_VDST}, 0x30000")
            e("s_branch L_hkYD_ret")
            g.lab("L_hkYW")
            for l in wo_chunk(2, S_RING, 0) + wo_chunk(3, S_RING, SLOT):
                e(l)
            e("s_branch L_hkYW_ret")
        for nm, c, slot in hooks:
            g.lab(nm)
            if c == 0:
                e(f"s_mov_b32 s{S_K+2}, 0")
                e(f"s_mov_b32 s{S_V+2}, 0")
                e(f"s_mov_b32 s{S_DRING}, 0x30000")
            for l in wo_chunk(c, S_RING, slot * SLOT):
                e(l)
            e(f"s_branch {nm}_ret")
        for uid, j, sb in slow_blocks:
            t0, t1, t2, t3 = V_T, V_T + 1, V_T + 2, V_T + 3
            s = V_S + sb * 8
            g.lab(f"L_slow{R}{uid}")
            e(f"v_mov_b32 v{t1}, v{t0}")
            e("s_nop 1")
            e(f"v_permlane32_swap_b32 v{t0}, v{t1}")
            e(f"v_max_f32 v{t0}, v{t0}, v{t1}")
            e(f"v_mov_b32 v{t1}, v{t0}")
            e("s_nop 1")
            e(f"v_permlane16_swap_b32 v{t0}, v{t1}")
            e(f"v_max_f32 v{t0}, v{t0}, v{t1}")
            e(f"v_max_f32 v{t0}, s{S_DMIN}, v{t0}")
            e(f"v_max_f32 v{t2}, 0, v{t0}")
            e(f"v_exp_f32 v{t2}, -v{t2}")
            e(f"v_sub_f32 v{V_NM+4*j}, v{V_NM+4*j}, v{t0}")
            for i in range(8):
                e(f"v_sub_f32 v{s+i}, v{s+i}, v{t0}")
            for i in range(1, 4):
                e(f"v_mov_b32 v{V_NM+4*j+i}, v{V_NM+4*j}")
            regs = [A_O + (t * 5 + j) * 4 + r for t in range(8) for r in range(4)] + [A_L + j * 4 + r for r in range(4)]
            for k in range(0, 36, 2):
                e(f"v_accvgpr_read_b32 v{t1}, a{regs[k]}")
                e(f"v_accvgpr_read_b32 v{t3}, a{regs[k+1]}")
                e(f"v_mul_f32 v{t1}, v{t1}, v{t2}")
                e(f"v_mul_f32 v{t3}, v{t3}, v{t2}")
                e(f"v_accvgpr_write_b32 a{regs[k]}, v{t1}")
                e(f"v_accvgpr_write_b32 a{regs[k+1]}, v{t3}")
            e("s_nop 1")
            e(f"s_branch L_ret{R}{uid}")

    g.lab("L_preX")
    e(f"s_mov_b32 s{S_VOFF}, {2*8192}")
    main_loop("X", nt_x)
    main_loop("Y", nt_y)

    g.lab("L_epi")
    q.clear()
    done[0] = -1
    for c in range(4):
        issue(f"W{c}", 8)
    WFA, WFB = A_KF, A_KF + 32
    WFC = [160 + 4 * k for k in range(5)] + [244 + 4 * k for k in range(3)]
    FA = [WFA + 4 * k for k in range(8)]
    FB = [WFB + 4 * k for k in range(8)]

    def w_reads(off, dst, tiles=range(8), abase=V_WRD):
        out = []
        for k, t in enumerate(tiles):
            for hf in range(2):
                d = dst[k] + hf * 2
                out.append(f"ds_read_b64_tr_b16 a[{d}:{d+1}], v{abase+t} offset:{off + hf*4096}")
        return out

    EA, EP, EM, EMP, EH = 1, 2, 3, 4, 5
    W4A = 8
    X0 = [wait_str("W1")] + w_reads(2 * SLOT, FA) + w_reads(3 * SLOT, FB)
    X0 += [f"v_add_u32 v{EA}, s{S_RING}, v{V_L16}", f"v_add_u32 v{EP}, s{S_PRING}, v{V_L16}",
           f"v_lshlrev_b32 v{EH}, 2, v0", f"v_add_u32 v{EM}, s{S_RING}, v{EH}", f"v_add_u32 v{EMP}, s{S_PRING}, v{EH}",
           f"v_add_u32 v{EH}, 0x10000, v{V_L16}", f"s_sub_u32 s{S_T3}, s{S_MISC}, s{S_RING}"]
    X0 += [f"v_add_u32 v{W4A+t}, s{S_T3}, v{V_WRD+t}" for t in range(8)]
    e("s_nop 1")
    interleave(pv(1, 4, 1), X0)
    stamp("attn")
    VL = V_S
    e("s_nop 3")
    for j in range(5):
        e(f"v_accvgpr_read_b32 v{VL+j}, a{A_L + j*4}")
    wait_tag("W2")
    for l in w_reads(0, WFC):
        e(l)
    e("s_waitcnt lgkmcnt(0)")
    for f in range(20):
        off = 2 * SLOT + f * 1024 if f < 16 else (f - 16) * 1024
        e(f"ds_write_b128 v{EA}, {ar(A_O + 80 + f*4)} offset:{off}")
    for j in range(5):
        e(f"ds_write_b32 v{EM}, v{V_NM+4*j} offset:{4096 + j*256}")
        e(f"ds_write_b32 v{EM}, v{VL+j} offset:{4096 + (5+j)*256}")
    e("s_waitcnt lgkmcnt(0)")
    e("s_barrier")
    stamp("b1")
    RX = V_Q
    for j in range(5):
        e(f"ds_read_b32 v{VL+5+j}, v{EMP} offset:{4096 + j*256}")
        e(f"ds_read_b32 v{VL+10+j}, v{EMP} offset:{4096 + (5+j)*256}")
    for f in range(20):
        off = 2 * SLOT + f * 1024 if f < 16 else (f - 16) * 1024
        e(f"ds_read_b128 {vr(RX + f*4)}, v{EP} offset:{off}")
    OWN = V_VF
    for i in range(64):
        e(f"v_accvgpr_read_b32 v{OWN+i}, a{A_O+i}")
    e("s_waitcnt lgkmcnt(15)")
    SC = V_T
    ta, tb, tc = V_P, V_P + 1, V_P + 2
    for j in range(5):
        e(f"v_min_f32 v{ta}, v{V_NM+4*j}, v{VL+5+j}")
        e(f"v_sub_f32 v{tb}, v{ta}, v{V_NM+4*j}")
        e(f"v_sub_f32 v{tc}, v{ta}, v{VL+5+j}")
        e(f"v_exp_f32 v{tb}, v{tb}")
        e(f"v_exp_f32 v{tc}, v{tc}")
        e("s_nop 0")
        e(f"v_mul_f32 v{ta}, v{tb}, v{VL+j}")
        e(f"v_fma_f32 v{ta}, v{tc}, v{VL+10+j}, v{ta}")
        e(f"v_rcp_f32 v{ta}, v{ta}")
        e("s_nop 0")
        e(f"v_mul_f32 v{SC+2*j}, v{tb}, v{ta}")
        e(f"v_mul_f32 v{SC+2*j+1}, v{tc}, v{ta}")
    OWN2 = V_NM
    for i in range(16):
        e(f"v_accvgpr_read_b32 v{OWN2+i}, a{A_O+64+i}")
    e("s_waitcnt lgkmcnt(0)")
    for sp in range(2):
        for j in range(5):
            od = RX + (sp * 5 + j) * 4
            for par in range(2):
                f = (2 * sp + par) * 5 + j
                r = RX + f * 4
                o = OWN + f * 4 if f < 16 else OWN2 + (f - 16) * 4
                sc = f"v[{SC+2*j}:{SC+2*j+1}]"
                e(f"v_pk_mul_f32 v[{r}:{r+1}], v[{r}:{r+1}], {sc} op_sel:[0,1] op_sel_hi:[1,1]")
                e(f"v_pk_mul_f32 v[{r+2}:{r+3}], v[{r+2}:{r+3}], {sc} op_sel:[0,1] op_sel_hi:[1,1]")
                e(f"v_pk_fma_f32 v[{r}:{r+1}], v[{o}:{o+1}], {sc}, v[{r}:{r+1}] op_sel_hi:[1,0,1]")
                e(f"v_pk_fma_f32 v[{r+2}:{r+3}], v[{o+2}:{o+3}], {sc}, v[{r+2}:{r+3}] op_sel_hi:[1,0,1]")
                e(f"v_cvt_pk_bf16_f32 v{od+2*par}, v{r}, v{r+1}")
                e(f"v_cvt_pk_bf16_f32 v{od+2*par+1}, v{r+2}, v{r+3}")
            e(f"ds_write_b128 v{EP}, {vr(od)} offset:{2*SLOT + (sp*5+j)*1024}")
    e("s_waitcnt lgkmcnt(0)")
    e("s_barrier")
    stamp("b2")
    A_OF = 0
    for wp in range(4):
        rg = wp ^ 1
        va = V_L16 if rg < 2 else EH
        for f in range(10):
            e(f"ds_read_b128 {ar(A_OF + (wp*10+f)*4)}, v{va} offset:{(rg & 1)*RING + 2*SLOT + f*1024}")
    S_PB = S_T2
    e(f"s_xor_b32 s{S_PB}, s{S_ISA}, 1")
    e(f"s_lshl_b32 s{S_PB}, s{S_PB}, 3")
    e(f"s_add_u32 s{S_PB}, s{S_PB}, s{S_B}")
    e(f"s_lshl_b32 s{S_PB}, s{S_PB}, 4")
    e(f"s_add_u32 s{S_PB}, s{S_PB}, s{S_P}")
    e(f"s_mul_i32 s{S_PB}, s{S_PB}, {PART}")
    e(f"s_mul_i32 s{S_T3}, s{S_W}, 20480")
    e(f"s_add_u32 s{S_PB}, s{S_PB}, s{S_T3}")
    e(f"v_add_u32 v{V_F0}, 1, v{V_F0}")
    e("s_waitcnt lgkmcnt(0)")
    e("s_barrier")
    stamp("comb")
    YACC = 40
    PK = 200

    def ymfma(c, wf, tiles=range(8), first=False):
        out = []
        for k, t in enumerate(tiles):
            for j in range(5):
                d = YACC + (t * 5 + j) * 4
                cc = "0" if first else vr(d)
                out.append(f"v_mfma_f32_16x16x32_bf16 {vr(d)}, {ar(wf[k])}, {ar(A_OF + (c*5+j)*4)}, {cc}")
        return out

    interleave(ymfma(0, FA, first=True), wo_chunk(5, S_RING, 2 * SLOT) + wo_chunk(6, S_RING, 3 * SLOT) + wo_chunk(7, S_RING, 0))
    issue("W5", 8)
    issue("W6", 8)
    issue("W7", 8)
    wait_tag("W3")
    interleave(ymfma(1, FB), w_reads(1 * SLOT, FA), end=24)
    def u_reads(u, dst):
        out = []
        tl = (2 * u, 2 * u + 1)
        out += w_reads(0, dst[0:2], tiles=tl, abase=W4A)
        out += w_reads(2 * SLOT, dst[2:4], tiles=tl)
        out += w_reads(3 * SLOT, dst[4:6], tiles=tl)
        out += w_reads(0, dst[6:8], tiles=tl)
        return out

    def u_mfma(u, src):
        out = []
        for cc in range(4):
            out += ymfma(4 + cc, src[2 * cc:2 * cc + 2], tiles=(2 * u, 2 * u + 1))
        return out

    def u_store(u):
        out = []
        for j in range(5):
            pk = PK + (j & 1) * 4
            for par in range(2):
                a = YACC + ((2 * u + par) * 5 + j) * 4
                out.append(f"v_cvt_pk_bf16_f32 v{pk+2*par}, v{a}, v{a+1}")
                out.append(f"v_cvt_pk_bf16_f32 v{pk+2*par+1}, v{a+2}, v{a+3}")
            out.append(f"s_add_u32 s{S_T3}, s{S_PB}, {(u*5+j)*1024}")
            out.append(f"buffer_store_dwordx4 {vr(pk)}, v{V_L16}, {srd(S_WS)}, s{S_T3} offen sc1")
        return out

    def flag(u):
        return [f"s_mov_b64 exec, {1 << u}",
                f"buffer_store_dword v{V_F0}, v{V_FOFF}, {srd(S_WS)}, s{S_FLG} offen sc1",
                "s_mov_b64 exec, -1"]

    for l in ymfma(2, WFC):
        e(l)
    e("s_waitcnt lgkmcnt(0)")
    w7 = wait_str("W7")
    stamp("y2")
    interleave(ymfma(3, FA), [w7] + u_reads(0, FB), start=20)
    stamp("y3")
    if defer:
        e(f"s_cmp_eq_u32 s{S_ISA}, 0")
        e("s_cbranch_scc1 L_dfr_done")
        e(f"s_mov_b32 s{S_CNT}, 0")
        g.lab("L_dfr")
        e(f"buffer_load_dword v{V_T}, v{V_XF+1}, {srd(S_WS)}, s{S_XFO} offen sc1")
        e("s_waitcnt vmcnt(0)")
        e(f"v_cmp_ne_u32 vcc, v{V_XF}, v{V_T}")
        e("s_cbranch_vccnz L_dfr_done")
        e("s_sleep 2")
        e(f"s_add_u32 s{S_CNT}, s{S_CNT}, 1")
        e(f"s_cmp_lt_u32 s{S_CNT}, {defer_max}")
        e("s_cbranch_scc1 L_dfr")
        g.lab("L_dfr_done")
    for u in range(4):
        src = FB if u % 2 == 0 else WFC
        nxt = WFC if u % 2 == 0 else FB
        e("s_waitcnt lgkmcnt(0)")
        X = []
        if u + 1 < 4:
            X += u_reads(u + 1, nxt)
        if u >= 1:
            X = X[:6] + u_store(u - 1) + X[6:]
        interleave(u_mfma(u, src), X, start=3, end=36)
        if u >= 1:
            issue(f"S{u-1}", 5)
        if u >= 2:
            wait_tag(f"S{u-2}")
            for l in flag(u - 2):
                e(l)
            issue(f"F{u-2}", 1)
    stamp("yu")
    e("s_nop 7")
    for l in u_store(3):
        e(l)
    issue("S3", 5)
    wait_tag("S2")
    for l in flag(2):
        e(l)
    issue("F2", 1)
    wait_tag("S3")
    for l in flag(3):
        e(l)
    issue("F3", 1)
    stamp("prod")
    e("s_barrier")
    e(f"s_cmp_lg_u32 s{S_W}, 0")
    e("s_cbranch_scc1 L_nomark")
    e(f"v_mov_b32 v{T+1}, 1")
    e(f"v_mov_b32 v{T+2}, s2")
    e("s_mov_b64 exec, 1")
    e(f"buffer_store_byte v{T+1}, v{T+2}, {srd(S_DBG)}, 0 offen sc1")
    e("s_mov_b64 exec, -1")
    g.lab("L_nomark")
    e(f"s_cmp_eq_u32 s{S_ISA}, 0")
    e("s_cbranch_scc1 L_fin")
    e(f"v_lshrrev_b32 v{T+9}, 2, v{V_POFF}")
    e(f"v_and_b32 v{T+10}, 1, v{T+9}")
    e(f"v_lshrrev_b32 v{T+9}, 1, v{T+9}")
    e(f"v_lshl_add_u32 v{T+9}, v{T+10}, 4, v{T+9}")
    e(f"s_lshl_b32 s{S_T3}, s{S_B}, 5")
    e(f"v_add_u32 v{T+9}, s{S_T3}, v{T+9}")
    S_BR = S_CNT
    e(f"s_mov_b32 s{S_BR}, 0")
    e("s_mov_b32 s4, 0x00003f80")
    e("s_mov_b32 s5, 0x3f800000")
    e(f"v_and_b32 v{T+5}, 15, v0")
    e(f"v_lshrrev_b32 v{T+6}, 4, v0")
    e(f"v_lshlrev_b32 v{T+6}, 3, v{T+6}")
    e(f"v_lshl_add_u32 v{T+5}, v{T+5}, 11, v{T+6}")
    e(f"s_mul_i32 s6, s{S_B}, 163840")
    e(f"s_lshl_b32 s{S_T3}, s{S_P}, 6")
    e(f"s_add_u32 s6, s6, s{S_T3}")
    e(f"s_mul_i32 s7, s{S_W}, 10240")
    e(f"v_add_u32 v{T+7}, s7, v{V_L16}")
    e(f"s_lshl_b32 s7, s{S_W}, 11")
    e(f"v_add_u32 v{T+8}, s7, v{V_L16}")
    g.lab("L_cons")
    e(f"s_lshl_b32 s8, s{S_BR}, 3")
    e(f"s_add_u32 s8, s8, s{S_B}")
    e("s_lshl_b32 s8, s8, 4")
    e(f"s_add_u32 s9, s8, s{S_P}")
    e("s_lshl_b32 s9, s9, 6")
    e(f"s_add_u32 s9, s9, {FLAG_BASE}")
    e(f"s_lshl_b32 s10, s{S_W}, 2")
    e("s_add_u32 s10, s10, s8")
    e(f"s_mul_i32 s10, s10, {PART}")
    e(f"s_mul_i32 s11, s{S_P}, 5120")
    e("s_add_u32 s10, s10, s11")
    e(f"s_xor_b32 s13, s{S_BR}, 1")
    e("s_lshl_b32 s13, s13, 3")
    e("s_mov_b32 s14, 0")
    LD, AC = 80, 40
    for i in range(40):
        e(f"v_mov_b32 v{AC+i}, 0")
    g.lab("L_poll")
    e(f"buffer_load_dword v{T+3}, v{V_POFF}, {srd(S_WS)}, s9 offen sc1")
    e("s_waitcnt vmcnt(0)")
    e(f"v_cmp_eq_u32 vcc, v{V_C0}, v{T+3}")
    e("s_cbranch_vccz L_go")
    if poll_sleep:
        e(f"s_sleep {poll_sleep}")
    e("s_add_u32 s14, s14, 1")
    e("s_and_b32 s15, s14, 31")
    e("s_cbranch_scc1 L_poll")
    e(f"buffer_load_ubyte v{T+3}, v{T+9}, {srd(S_DBG)}, s13 offen sc1")
    e("s_waitcnt vmcnt(0)")
    e(f"v_cmp_eq_u32 vcc, 0, v{T+3}")
    e("s_cbranch_vccnz L_poll")
    g.lab("L_go")
    stamp("poll")
    for y in range(4):
        e(f"s_add_u32 s11, s10, {y*PART}")
        for j in range(5):
            if j < 4:
                e(f"buffer_load_dwordx4 {vr(LD + (y*5+j)*4)}, v{V_L16}, {srd(S_WS)}, s11 offen offset:{j*1024} sc1")
            else:
                e(f"s_add_u32 s11, s11, 4096")
                e(f"buffer_load_dwordx4 {vr(LD + (y*5+j)*4)}, v{V_L16}, {srd(S_WS)}, s11 offen sc1")
    for y in range(4):
        e(f"s_waitcnt vmcnt({15 - 5*y})")
        for j in range(5):
            for r in range(4):
                x = LD + (y * 5 + j) * 4 + r
                e(f"v_dot2c_f32_bf16 v{AC + j*8 + 2*r}, s4, v{x}")
                e(f"v_dot2c_f32_bf16 v{AC + j*8 + 2*r + 1}, s5, v{x}")
    e("s_nop 2")
    for j in range(5):
        for h2 in range(2):
            e(f"ds_write_b128 v{T+7}, {vr(AC + j*8 + h2*4)} offset:{(j*2+h2)*1024}")
    e(f"s_lshl_b32 s11, s{S_BR}, 10")
    e("s_add_u32 s11, s11, s6")
    e(f"s_lshl_b32 s12, s{S_W}, 15")
    e("s_add_u32 s12, s12, s11")
    e("s_waitcnt lgkmcnt(0)")
    e("s_barrier")

    def final_block(va, extra_off, soff):
        k = 0
        for w in range(4):
            for h2 in range(2):
                e(f"ds_read_b128 {vr(LD + k*4)}, v{va} offset:{w*10240 + h2*1024 + extra_off}")
                k += 1
        e("s_waitcnt lgkmcnt(0)")
        for i in range(8):
            h2, r = i >> 2, i & 3
            srcs = [LD + (kk * 2 + h2) * 4 + r for kk in range(4)]
            e(f"v_add_f32 v{AC+i}, v{srcs[0]}, v{srcs[1]}")
            e(f"v_add_f32 v{AC+8+i}, v{srcs[2]}, v{srcs[3]}")
        for i in range(8):
            e(f"v_add_f32 v{AC+i}, v{AC+i}, v{AC+8+i}")
        for i in range(4):
            e(f"v_cvt_pk_bf16_f32 v{AC+16+i}, v{AC+2*i}, v{AC+2*i+1}")
        e(f"buffer_store_dwordx2 v[{AC+16}:{AC+17}], v{T+5}, {srd(S_OUT)}, {soff} offen {out_pol}")
        e(f"buffer_store_dwordx2 v[{AC+18}:{AC+19}], v{T+5}, {srd(S_OUT)}, {soff} offen offset:32 {out_pol}")

    final_block(T + 8, 0, "s12")
    e(f"s_cmp_lg_u32 s{S_W}, 0")
    e("s_cbranch_scc1 L_skip4")
    e(f"s_add_u32 s12, s11, {4*32768}")
    final_block(T + 8, 4 * 2048, "s12")
    g.lab("L_skip4")
    e("s_barrier")
    e(f"v_mov_b32 v{V_C0}, v{V_C0+1}")
    e(f"s_add_u32 s{S_BR}, s{S_BR}, 1")
    e(f"s_cmp_lt_u32 s{S_BR}, 2")
    e("s_cbranch_scc1 L_cons")
    g.lab("L_fin")
    if stamps:
        e("s_waitcnt vmcnt(0)")
        stamp("end")
        n = len(stamps)
        e(f"s_lshl_b32 s{S_T1}, s2, 2")
        e(f"s_add_u32 s{S_T1}, s{S_T1}, s{S_W}")
        e(f"s_mul_i32 s{S_T1}, s{S_T1}, {n*8}")
        e(f"s_add_u32 s{S_T1}, s{S_T1}, {WS_BYTES - 256*4*n*8}")
        e("s_waitcnt lgkmcnt(0)")
        e("v_mov_b32 v8, 0")
        e("s_mov_b64 exec, 1")
        for k in range(n):
            e(f"v_mov_b32 v4, s{S_STAMP+2*k}")
            e(f"v_mov_b32 v5, s{S_STAMP+2*k+1}")
            e(f"buffer_store_dwordx2 v[4:5], v8, {srd(S_WS)}, s{S_T1} offen offset:{k*8}")
            e("s_nop 1")
    g.lab("L_end")
    e("s_endpgm")
    g.raw('.section .rodata,"a"')
    g.raw(".p2align 6")
    g.raw(f".amdhsa_kernel {NAME}_kernel")
    g.raw("  .amdhsa_next_free_vgpr 512")
    g.raw("  .amdhsa_next_free_sgpr 102")
    g.raw("  .amdhsa_accum_offset 256")
    g.raw("  .amdhsa_group_segment_fixed_size 0")
    g.raw("  .amdhsa_kernarg_size 104")
    g.raw("  .amdhsa_user_sgpr_count 2")
    g.raw("  .amdhsa_user_sgpr_kernarg_segment_ptr 1")
    g.raw("  .amdhsa_system_sgpr_workgroup_id_x 1")
    g.raw("  .amdhsa_float_denorm_mode_32 3")
    g.raw(".end_amdhsa_kernel")
    return g.text()


STAMPS = ["start", "c0", "qdone", "loop", "attn", "comb", "prod", "end"]
if __name__ == "__main__":
    t = gen()
    check(t)
    open("v5.s", "w").write(t)
    open("v5_st.s", "w").write(gen(stamps=STAMPS))
    open("v5_xw_st.s", "w").write(gen(stamps=STAMPS, ywarm=False))
```

```python
import gen5
S = gen5.STAMPS
V = {
 "p_d0": dict(nt_x="", pf=0),
 "p_d2": dict(nt_x="", pf=2, pf_start=12),
 "p_d3": dict(nt_x="", pf=3, pf_start=10),
 "p_n2": dict(nt_x="nt", pf=2, pf_start=12),
 "p_n0": dict(nt_x="nt", pf=0),
}
for k, v in V.items():
    open(k + ".s", "w").write(gen5.gen(stamps=S, **v))
```

```python
import sys, struct, math
from asmlib import Asm, check

NAME = "concat_heads__gqa_block_cached__mha_block_cached__near_ridge"
HDR = open("cdna_kernels/" + NAME + ".s.ref").read().split("; Override launch")[0]


def f2u(x):
    return struct.unpack("<I", struct.pack("<f", x))[0]


SCALE_C = math.log2(math.e) / math.sqrt(128.0)
THR_T = 8.0
WS_BYTES = 268435456
PART = 81920
FLAG_BASE = 32 * 1024 * 1024
XF_BASE = FLAG_BASE + 65536

S_X, S_WQ, S_K, S_V, S_WO, S_WS, S_OUT, S_DBG = 32, 36, 40, 44, 48, 52, 56, 60
S_W, S_PW, S_ISA, S_B, S_H0, S_RING, S_MISC, S_CNT, S_KOFF = 64, 65, 66, 67, 68, 69, 70, 72, 73
S_T0, S_T1, S_T2, S_T3 = 74, 75, 76, 77
S_PRING, S_PMISC, S_THRESH, S_DMIN = 78, 79, 80, 81
S_C2 = 82
S_DRING, S_P = 30, 31
S_ROT, S_X3, S_WOB, S_FLG = 3, 100, 101, 29
S_STAMP = 84
S_WOX = 24
S_PK, S_PV = 4, 8
S_HOFF, S_KDST, S_VDST, S_PFO, S_VOFF, S_KB, S_VB, S_XFO = 12, 13, 14, 15, 71, 16, 17, 18

V_OFFK = 1
V_OFFV = 5
V_L16 = 7
V_KRD = 8
V_VRD = 12
V_ONES = 20
V_OFFW = 24
V_WRD = 28
V_F0, V_FOFF, V_POFF = 36, 37, 38
V_Q = 40
V_S = 120
V_P = 136
V_VF = 144
V_NM = 208
V_T = 228
V_C0 = 244
V_XF = 246
A_O = 0
A_L = 160
A_KF = 180

RING = 32768
SLOT = 8192
MISC0 = 131072
NEG_INF = 0xff800000


def srd(n):
    return f"s[{n}:{n+3}]"


def vr(b, n=4):
    return f"v[{b}:{b+n-1}]"


def ar(b, n=4):
    return f"a[{b}:{b+n-1}]"


def gen(nt_x="nt", nt_y="", stamps=None, poll_sleep=1, warm=True, pf=0, pf_start=12, spread=True, defer=True, defer_max=400, out_pol="", ywarm=True, codewarm=False):
    g = Asm()
    e = g.e
    g.raw(HDR.rstrip("\n"))
    g.raw("; @launch grid=(256,1,1) block=(256,1,1) lds=163840")
    g.raw('.amdgcn_target "amdgcn-amd-amdhsa--gfx950"')
    g.raw(".text")
    g.raw(f".globl {NAME}_kernel")
    g.raw(".p2align 8")
    g.raw(f".type {NAME}_kernel,@function")
    g.lab(f"{NAME}_kernel")
    stamps = stamps or []

    def stamp(name):
        if name in stamps:
            k = stamps.index(name)
            e(f"s_memrealtime s[{S_STAMP+2*k}:{S_STAMP+2*k+1}]")

    def put(x):
        if x.endswith(":"):
            g.raw(x)
        else:
            e(x)

    def interleave(M, X, start=0, end=None):
        n = len(M) if end is None else end
        k = 0
        slots = max(1, n - start)
        for i, m in enumerate(M):
            put(m)
            if start <= i < n:
                tgt = (len(X) * (i - start + 1) + slots - 1) // slots
                while k < min(tgt, len(X)):
                    put(X[k]); k += 1
        while k < len(X):
            put(X[k]); k += 1

    T = V_T
    e("s_cmp_ge_u32 s2, 256")
    e("s_cbranch_scc1 L_end")
    stamp("start")
    e("s_load_dwordx16 s[4:19], s[0:1], 0")
    e("s_load_dwordx8 s[20:27], s[0:1], 64")
    e("s_load_dwordx2 s[28:29], s[0:1], 96")
    e("v_lshrrev_b32 v1, 6, v0")
    e("v_and_b32 v0, 63, v0")
    e(f"v_readfirstlane_b32 s{S_W}, v1")
    e(f"s_and_b32 s{S_T0}, s2, 7")
    e(f"s_lshr_b32 s{S_T1}, s2, 3")
    e(f"s_and_b32 s{S_ISA}, s{S_T1}, 1")
    e(f"s_lshr_b32 s{S_B}, s{S_T1}, 2")
    e(f"s_bfe_u32 s{S_T1}, s{S_T1}, 0x10001")
    e(f"s_lshl_b32 s{S_P}, s{S_T0}, 1")
    e(f"s_add_u32 s{S_P}, s{S_P}, s{S_T1}")
    e(f"s_lshl_b32 s{S_H0}, s{S_P}, 1")
    e(f"s_lshl_b32 s{S_ROT}, s{S_T1}, 2")
    e(f"s_add_u32 s{S_ROT}, s{S_ROT}, s{S_B}")
    e(f"s_and_b32 s{S_PW}, s{S_W}, 1")
    e(f"s_lshl_b32 s{S_RING}, s{S_W}, 15")
    e(f"s_mov_b32 s{S_DRING}, s{S_RING}")
    e(f"s_xor_b32 s{S_PRING}, s{S_RING}, {RING}")
    e(f"s_lshl_b32 s{S_MISC}, s{S_W}, 13")
    e(f"s_add_u32 s{S_MISC}, s{S_MISC}, {MISC0}")
    e(f"s_xor_b32 s{S_PMISC}, s{S_MISC}, 8192")
    e(f"s_lshl_b32 s{S_T1}, s{S_B}, 5")
    e(f"s_add_u32 s{S_T1}, s{S_T1}, s{S_H0}")
    e(f"s_lshr_b32 s{S_T2}, s{S_W}, 1")
    e(f"s_add_u32 s{S_T1}, s{S_T1}, s{S_T2}")
    e(f"s_lshl_b32 s{S_T2}, s{S_B}, 3")
    e(f"s_add_u32 s{S_T2}, s{S_T2}, s{S_T0}")
    e(f"s_cmp_eq_u32 s{S_ISA}, 1")
    e(f"s_cselect_b32 s{S_T1}, s{S_T2}, s{S_T1}")
    e(f"s_lshl_b32 s{S_T1}, s{S_T1}, 18")
    e(f"s_lshl_b32 s{S_T2}, s{S_PW}, 17")
    e(f"s_add_u32 s{S_T1}, s{S_T1}, s{S_T2}")
    e(f"s_mul_i32 s{S_T2}, s{S_B}, 81920")
    e(f"s_cmp_lt_u32 s{S_W}, 2")
    e(f"s_cselect_b32 s{S_X3}, 8, 64")
    e(f"s_add_u32 s{S_X3}, s{S_X3}, s{S_W}")
    OFFWQ, OFFX, XR, WR = V_S, V_S + 2, V_S + 3, V_S + 5
    e(f"v_lshrrev_b32 v{T}, 4, v0")
    e(f"v_and_b32 v{T+1}, 15, v0")
    e(f"v_lshlrev_b32 v{V_L16}, 4, v0")
    e(f"v_lshrrev_b32 v{T+2}, 5, v0")
    e(f"v_and_b32 v{T+3}, 31, v0")
    for i in range(2):
        e(f"v_add_u32 v{T+4}, {2*i}, v{T+2}")
        e(f"v_lshlrev_b32 v{T+4}, 2, v{T+4}")
        e(f"v_xor_b32 v{T+4}, v{T+4}, v{T+3}")
        e(f"v_lshlrev_b32 v{T+4}, 4, v{T+4}")
        e(f"v_lshl_add_u32 v{OFFWQ+i}, v{T+2}, 13, v{T+4}")
    e(f"s_lshl_b32 s{S_T3}, s{S_PW}, 2")
    e(f"v_add_u32 v{T+4}, s{S_T3}, v{T}")
    e(f"v_and_b32 v{T+5}, 7, v0")
    e(f"v_xor_b32 v{T+4}, v{T+4}, v{T+5}")
    e(f"v_lshlrev_b32 v{T+4}, 4, v{T+4}")
    e(f"v_lshrrev_b32 v{T+5}, 3, v0")
    e(f"v_lshl_add_u32 v{OFFX}, v{T+5}, 10, v{T+4}")
    for i in range(4):
        e(f"v_add_u32 v{T+2}, {4*i}, v{T}")
        e(f"v_xor_b32 v{T+2}, v{T+2}, v{T+1}")
        e(f"v_lshlrev_b32 v{T+2}, 4, v{T+2}")
        e(f"v_lshl_add_u32 v{V_OFFK+i}, v{T}, 8, v{T+2}")
    for i in range(2):
        e(f"v_add_u32 v{T+2}, {4*i}, v{T}")
        e(f"v_lshlrev_b32 v{T+2}, 1, v{T+2}")
        e(f"v_xor_b32 v{T+2}, v{T+2}, v{T+1}")
        e(f"v_lshlrev_b32 v{T+2}, 4, v{T+2}")
        e(f"v_lshl_add_u32 v{V_OFFV+i}, v{T}, 8, v{T+2}")
    e("s_waitcnt lgkmcnt(0)")
    e(f"s_cmp_eq_u32 s{S_ISA}, 1")
    e(f"s_cselect_b64 s[{S_X}:{S_X+1}], s[4:5], s[14:15]")
    e(f"s_cselect_b64 s[{S_WQ}:{S_WQ+1}], s[10:11], s[20:21]")
    e(f"s_cselect_b64 s[{S_K}:{S_K+1}], s[6:7], s[16:17]")
    e(f"s_cselect_b64 s[{S_V}:{S_V+1}], s[8:9], s[18:19]")
    e(f"s_cselect_b64 s[{S_WO}:{S_WO+1}], s[12:13], s[22:23]")
    e(f"s_add_u32 s{S_X}, s{S_X}, s{S_T2}")
    e(f"s_addc_u32 s{S_X+1}, s{S_X+1}, 0")
    e(f"s_add_u32 s{S_K}, s{S_K}, s{S_T1}")
    e(f"s_addc_u32 s{S_K+1}, s{S_K+1}, 0")
    e(f"s_add_u32 s{S_V}, s{S_V}, s{S_T1}")
    e(f"s_addc_u32 s{S_V+1}, s{S_V+1}, 0")
    e(f"s_mov_b32 s{S_X+2}, 81920")
    e(f"s_mov_b32 s{S_WQ+2}, 4194304")
    e(f"s_mov_b32 s{S_K+2}, 131072")
    e(f"s_mov_b32 s{S_V+2}, 131072")
    e(f"s_mov_b32 s{S_WO+2}, 4194304")
    e(f"s_mov_b32 s{S_WS}, s28")
    e(f"s_mov_b32 s{S_WS+1}, s29")
    e(f"s_mov_b32 s{S_WS+2}, {WS_BYTES}")
    e(f"s_mov_b32 s{S_OUT}, s24")
    e(f"s_mov_b32 s{S_OUT+1}, s25")
    e(f"s_mov_b32 s{S_OUT+2}, 1310720")
    e(f"s_mov_b32 s{S_DBG}, s26")
    e(f"s_mov_b32 s{S_DBG+1}, s27")
    e(f"s_mov_b32 s{S_DBG+2}, 256")
    for s_ in (S_X, S_WQ, S_K, S_V, S_WO, S_WS, S_OUT, S_DBG):
        e(f"s_mov_b32 s{s_+3}, 0x20000")

    e(f"s_lshl_b32 s{S_T3}, s{S_B}, 5")
    e(f"s_add_u32 s{S_T3}, s{S_T3}, s{S_H0}")
    e(f"s_lshl_b32 s{S_T3}, s{S_T3}, 18")
    e(f"s_add_u32 s{S_PK}, s16, s{S_T3}")
    e(f"s_addc_u32 s{S_PK+1}, s17, 0")
    e(f"s_add_u32 s{S_PV}, s18, s{S_T3}")
    e(f"s_addc_u32 s{S_PV+1}, s19, 0")
    e(f"s_mov_b32 s{S_PK+2}, 524288")
    e(f"s_mov_b32 s{S_PV+2}, 524288")
    e(f"s_mov_b32 s{S_PK+3}, 0x20000")
    e(f"s_mov_b32 s{S_PV+3}, 0x20000")
    e(f"s_mov_b32 s{S_WOX}, s22")
    e(f"s_mov_b32 s{S_WOX+1}, s23")
    e(f"s_mov_b32 s{S_WOX+2}, 4194304")
    e(f"s_mov_b32 s{S_WOX+3}, 0x20000")
    e(f"s_lshr_b32 s{S_HOFF}, s{S_W}, 1")
    e(f"s_lshl_b32 s{S_HOFF}, s{S_HOFF}, 12")
    e(f"s_lshl_b32 s{S_KB}, s{S_PW}, 15")
    e(f"s_add_u32 s{S_VB}, s{S_KB}, 0x10000")
    e(f"s_add_u32 s{S_KDST}, s{S_KB}, s{S_HOFF}")
    e(f"s_add_u32 s{S_VDST}, s{S_VB}, s{S_HOFF}")
    e(f"s_lshl_b32 s{S_PFO}, s{S_W}, 17")
    e(f"s_add_u32 s{S_PFO}, s{S_PFO}, {pf_start*8192}")
    e(f"s_cmp_eq_u32 s{S_ISA}, 1")
    e(f"s_cselect_b32 s{S_KB}, s{S_KB}, s{S_RING}")
    e(f"s_cselect_b32 s{S_VB}, s{S_VB}, s{S_RING}")

    q = []
    done = [-1]
    rolecnt = [0]

    def by_role(xl, yl, eq=True):
        nx = sum(1 for l in xl if l.startswith("buffer_"))
        ny = sum(1 for l in yl if l.startswith("buffer_"))
        assert nx == ny or not eq, (nx, ny)
        k = rolecnt[0]
        rolecnt[0] += 1
        return ([f"s_cmp_eq_u32 s{S_ISA}, 1", f"s_cbranch_scc1 L_ry{k}"] + xl + [f"s_branch L_re{k}", f"L_ry{k}:"] + yl + [f"L_re{k}:"])

    def dma_half(which, slot, goff_imm=None, nt=""):
        s_ = S_K if which == "K" else S_V
        dst = S_KDST if which == "K" else S_VDST
        so = S_KOFF if which == "K" else S_VOFF
        out = [f"s_add_u32 m0, s{dst}, {slot*SLOT}"]
        if goff_imm is not None:
            out.append(f"s_add_u32 s{S_T3}, s{S_HOFF}, {goff_imm}")
            so = S_T3
        else:
            out.append("s_nop 0")
        for i in range(4):
            vo = V_OFFK + i if which == "K" else V_OFFV + (i & 1)
            out.append(f"buffer_load_dwordx4 v{vo}, {srd(s_)}, s{so} offen offset:{i*1024} {nt} lds")
        return out

    def warm_loads(cs, sr=S_WO):
        out = [f"s_lshl_b32 s{S_CNT}, s{S_B}, 12", f"s_add_u32 s{S_CNT}, s{S_CNT}, s{S_WOB}"]
        for c in cs:
            out.append(f"s_add_u32 s{S_T3}, s{S_CNT}, {c*32768}")
            out.append(f"buffer_load_dwordx4 v[248:251], v{V_OFFW}, {srd(sr)}, s{S_T3} offen")
        return out

    def helper(n):
        out = []
        for i in range(n):
            out.append(f"buffer_load_dwordx4 v[248:251], v{V_L16}, {srd(S_PK)}, s{S_PFO} offen offset:{i*1024}")
            out.append(f"buffer_load_dwordx4 v[252:255], v{V_L16}, {srd(S_PV)}, s{S_PFO} offen offset:{i*1024}")
        out.append(f"s_add_u32 s{S_PFO}, s{S_PFO}, {n*1024}")
        return out

    def issue(tag, n=1):
        q.extend([tag] * n)

    def wait_str(tag):
        last = max(i for i, t in enumerate(q) if t == tag)
        n = len(q) - 1 - last
        if last <= done[0]:
            return None
        done[0] = last
        assert n <= 63, n
        return f"s_waitcnt vmcnt({n})"

    def wait_tag(tag):
        w = wait_str(tag)
        if w:
            e(w)

    def dma_kv(which, slot, goff_imm=None, nt=""):
        s_ = S_K if which == "K" else S_V
        out = []
        for half in range(2):
            out.append(f"s_add_u32 m0, s{S_DRING}, {slot*SLOT + half*4096}")
            if goff_imm is not None:
                out.append(f"s_mov_b32 s{S_T3}, {goff_imm + half*4096}")
            else:
                out.append(f"s_add_u32 s{S_T3}, s{S_KOFF}, {half*4096}")
            for i in range(4):
                vo = V_OFFK + i if which == "K" else V_OFFV + (i & 1)
                out.append(f"buffer_load_dwordx4 v{vo}, {srd(s_)}, s{S_T3} offen offset:{i*1024} {nt} lds")
        return out

    def wo_chunk(c, base_sreg, off):
        out = []
        for half in range(2):
            out.append(f"s_add_u32 m0, s{base_sreg}, {off + half*4096}")
            out.append(f"s_add_u32 s{S_T3}, s{S_WOB}, {c*32768 + half*16384}")
            for i in range(4):
                out.append(f"buffer_load_dwordx4 v{V_OFFW+i}, {srd(S_WO)}, s{S_T3} offen offset:{i*1024} lds")
        return out

    S_WC = S_T0
    e(f"s_lshl_b32 s{S_WC}, s{S_W}, 17")
    e(f"s_lshl_b32 s{S_T1}, s{S_H0}, 8")
    e(f"s_add_u32 s{S_WC}, s{S_WC}, s{S_T1}")
    S_KC = S_T1
    S_XW = S_T2
    e(f"s_lshl_b32 s{S_XW}, s{S_W}, 13")

    def wslot(n):
        return 1 + ((n + 1) % 3)

    def chunk(n):
        out = []
        out.append(f"s_add_u32 s{S_KC}, s{S_ROT}, {n}")
        out.append(f"s_and_b32 s{S_KC}, s{S_KC}, 7")
        out.append(f"s_lshl_b32 s{S_CNT}, s{S_KC}, 19")
        out.append(f"s_add_u32 s{S_CNT}, s{S_CNT}, s{S_WC}")
        for i in range(8):
            out.append(f"s_add_u32 m0, s{S_RING}, {wslot(n)*SLOT + i*1024}")
            out.append(f"s_add_u32 s{S_T3}, s{S_CNT}, {i*16384}")
            out.append(f"buffer_load_dwordx4 v{OFFWQ + (i&1)}, {srd(S_WQ)}, s{S_T3} offen lds")
        out.append(f"s_lshl_b32 s{S_KC}, s{S_KC}, 7")
        xb = MISC0 + (n % 3) * 10240
        for k in range(3):
            if k < 2:
                out.append(f"s_lshl_b32 s{S_CNT}, s{S_W}, 10")
                out.append(f"s_add_u32 m0, s{S_CNT}, {xb + k*4096}")
                out.append(f"s_add_u32 s{S_T3}, s{S_XW}, {k*32768}")
            else:
                out.append(f"s_lshl_b32 s{S_CNT}, s{S_X3}, 10")
                out.append(f"s_add_u32 m0, s{S_CNT}, {xb}")
                out.append(f"s_lshl_b32 s{S_T3}, s{S_X3}, 13")
            out.append(f"s_add_u32 s{S_T3}, s{S_T3}, s{S_KC}")
            out.append(f"buffer_load_dwordx4 v{OFFX}, {srd(S_X)}, s{S_T3} offen lds")
        return out

    stamp("pre")
    for n in range(3):
        for l in chunk(n):
            e(l)
        issue(f"C{n}", 11)
    for l in by_role(dma_kv("K", 0, goff_imm=0), dma_half("K", 0, goff_imm=0) + dma_half("V", 0, goff_imm=0)):
        put(l)
    issue("K0", 8)
    stamp("issued")
    e(f"s_xor_b32 s{S_FLG}, s{S_ISA}, 1")
    e(f"s_lshl_b32 s{S_FLG}, s{S_FLG}, 3")
    e(f"s_add_u32 s{S_FLG}, s{S_FLG}, s{S_B}")
    e(f"s_lshl_b32 s{S_FLG}, s{S_FLG}, 2")
    e(f"s_add_u32 s{S_FLG}, s{S_FLG}, s{S_W}")
    e(f"s_lshl_b32 s{S_FLG}, s{S_FLG}, 8")
    e(f"s_lshl_b32 s{S_T3}, s{S_P}, 2")
    e(f"s_add_u32 s{S_FLG}, s{S_FLG}, s{S_T3}")
    e(f"s_add_u32 s{S_FLG}, s{S_FLG}, {FLAG_BASE}")
    e(f"v_and_b32 v{T+2}, 3, v0")
    e(f"v_lshlrev_b32 v{V_FOFF}, 6, v{T+2}")
    e(f"buffer_load_dword v{V_F0}, v{V_FOFF}, {srd(S_WS)}, s{S_FLG} offen sc1")
    e(f"v_lshlrev_b32 v{T+2}, 2, v{T+2}")
    e(f"s_lshl_b32 s{S_T3}, s{S_W}, 4")
    e(f"v_add_u32 v{V_POFF}, s{S_T3}, v{T+2}")
    e(f"s_lshl_b32 s{S_T3}, s{S_B}, 4")
    e(f"s_add_u32 s{S_T3}, s{S_T3}, s{S_P}")
    e(f"s_lshl_b32 s{S_T3}, s{S_T3}, 6")
    e(f"s_add_u32 s{S_T3}, s{S_T3}, {FLAG_BASE}")
    e(f"buffer_load_dword v{V_C0}, v{V_POFF}, {srd(S_WS)}, s{S_T3} offen sc1")
    e(f"s_add_u32 s{S_T3}, s{S_T3}, 8192")
    e(f"buffer_load_dword v{V_C0+1}, v{V_POFF}, {srd(S_WS)}, s{S_T3} offen sc1")
    e(f"s_lshl_b32 s{S_XFO}, s{S_B}, 4")
    e(f"s_add_u32 s{S_XFO}, s{S_XFO}, s{S_P}")
    e(f"s_lshl_b32 s{S_XFO}, s{S_XFO}, 6")
    e(f"s_add_u32 s{S_XFO}, s{S_XFO}, {XF_BASE}")
    e(f"v_mov_b32 v{V_XF+1}, 0")
    e(f"buffer_load_dword v{V_XF}, v{V_XF+1}, {srd(S_WS)}, s{S_XFO} offen sc1")
    issue("FR", 4)
    if codewarm:
        e("s_getpc_b64 s[20:21]")
        g.lab("L_pc")
        e(f"s_sub_u32 s20, s20, L_pc-{NAME}_kernel")
        e("s_subb_u32 s21, s21, 0")
        e(f"s_lshr_b32 s{S_T3}, s2, 3")
        e(f"s_lshl_b32 s{S_T3}, s{S_T3}, 2")
        e(f"s_add_u32 s{S_T3}, s{S_T3}, s{S_W}")
        e(f"s_mul_i32 s{S_T3}, s{S_T3}, 384")
        e(f"s_min_u32 s{S_T3}, s{S_T3}, L_end-{NAME}_kernel-1024")
        e(f"v_add_u32 v{T+2}, s{S_T3}, v{V_L16}")
        e(f"global_load_dwordx4 v[252:255], v{T+2}, s[20:21]")
        issue("CW", 1)
    for i in range(4):
        e(f"v_add_u32 v{T+2}, {4*(i&1)}, v{T}")
        e(f"v_lshlrev_b32 v{T+2}, 1, v{T+2}")
        e(f"v_xor_b32 v{T+2}, v{T+2}, v{T+1}")
        e(f"v_lshlrev_b32 v{T+2}, 4, v{T+2}")
        e(f"v_lshl_add_u32 v{V_OFFW+i}, v{T}, 10, v{T+2}")
        if i:
            e(f"v_add_u32 v{V_OFFW+i}, {3072*i}, v{V_OFFW+i}")
    e(f"v_xor_b32 v{T+2}, v{T}, v{T+1}")
    e(f"s_lshl_b32 s{S_T3}, s{S_PW}, 3")
    e(f"v_xor_b32 v{T+2}, s{S_T3}, v{T+2}")
    e(f"v_lshlrev_b32 v{T+3}, 8, v{T+1}")
    e(f"v_add_u32 v{T+3}, s{S_KB}, v{T+3}")
    for s in range(4):
        e(f"v_xor_b32 v{T+4}, {4*s}, v{T+2}")
        e(f"v_lshl_add_u32 v{V_KRD+s}, v{T+4}, 4, v{T+3}")
    e(f"v_lshrrev_b32 v{T+2}, 2, v0")
    e(f"v_lshlrev_b32 v{T+3}, 8, v{T+2}")
    e(f"v_add_u32 v{T+3}, s{S_RING}, v{T+3}")
    e(f"v_bfe_u32 v{T+4}, v0, 1, 1")
    e(f"v_lshl_add_u32 v{T+3}, v{T+4}, 4, v{T+3}")
    e(f"v_and_b32 v{T+4}, 1, v0")
    e(f"v_lshl_add_u32 v{T+3}, v{T+4}, 3, v{T+3}")
    e(f"v_and_b32 v{T+2}, 7, v{T+2}")
    e(f"v_lshlrev_b32 v{T+2}, 1, v{T+2}")
    for t in range(8):
        e(f"v_xor_b32 v{T+4}, {2*t}, v{T+2}")
        e(f"v_lshl_add_u32 v{V_WRD+t}, v{T+4}, 4, v{T+3}")
    e(f"v_xor_b32 v{T+2}, s{S_T3}, v{T+2}")
    e(f"s_sub_u32 s{S_CNT}, s{S_VB}, s{S_RING}")
    e(f"v_add_u32 v{T+3}, s{S_CNT}, v{T+3}")
    for t in range(8):
        e(f"v_xor_b32 v{T+4}, {2*t}, v{T+2}")
        e(f"v_lshl_add_u32 v{V_VRD+t}, v{T+4}, 4, v{T+3}")
    e(f"v_lshrrev_b32 v{T+2}, 1, v{T+1}")
    e(f"v_xor_b32 v{T+2}, v{T+2}, v{T}")
    e(f"v_lshlrev_b32 v{T+3}, 7, v{T+1}")
    e(f"v_add_u32 v{T+3}, {MISC0}, v{T+3}")
    e(f"v_lshl_add_u32 v{XR}, v{T+2}, 4, v{T+3}")
    e(f"v_xor_b32 v{T+2}, 4, v{T+2}")
    e(f"v_lshl_add_u32 v{XR+1}, v{T+2}, 4, v{T+3}")
    e(f"v_bfe_u32 v{T+2}, v0, 2, 2")
    e(f"v_bfe_u32 v{T+3}, v0, 4, 1")
    e(f"v_lshl_add_u32 v{T+3}, v{T+3}, 3, v{T+2}")
    e(f"v_lshlrev_b32 v{T+3}, 9, v{T+3}")
    e(f"v_lshrrev_b32 v{T+4}, 5, v0")
    e(f"v_lshl_add_u32 v{T+3}, v{T+4}, 15, v{T+3}")
    e(f"v_and_b32 v{T+4}, 3, v0")
    e(f"s_lshl_b32 s{S_T3}, s{S_W}, 3")
    e(f"v_add_u32 v{T+4}, s{S_T3}, v{T+4}")
    e(f"v_lshlrev_b32 v{T+2}, 2, v{T+2}")
    e(f"v_xor_b32 v{T+4}, v{T+4}, v{T+2}")
    e(f"v_lshl_add_u32 v{WR}, v{T+4}, 4, v{T+3}")
    e(f"v_xor_b32 v{T+4}, 4, v{T+4}")
    e(f"v_lshl_add_u32 v{WR+1}, v{T+4}, 4, v{T+3}")
    e(f"v_add_u32 v{WR+2}, 0x10000, v{WR}")
    e(f"v_add_u32 v{WR+3}, 0x10000, v{WR+1}")
    for i in range(4):
        e(f"v_mov_b32 v{V_ONES+i}, 0x3f803f80")
    for i in range(20):
        e(f"v_mov_b32 v{V_NM+i}, 0")
    for i in range(32):
        e(f"v_mov_b32 v{V_VF+32+i}, 0")
    for i in range(8):
        e(f"v_mov_b32 v{V_P+i}, 0")
    for i in range(144, 180):
        e(f"v_accvgpr_write_b32 a{i}, 0")
    e(f"s_mov_b32 s{S_C2}, {f2u(SCALE_C):#x}")
    e(f"s_mov_b32 s{S_C2+1}, {f2u(SCALE_C):#x}")
    e(f"s_mov_b32 s{S_THRESH}, {NEG_INF:#x}")
    e(f"s_mov_b32 s{S_DMIN}, {NEG_INF:#x}")
    e(f"s_lshl_b32 s{S_WOB}, s{S_H0}, 17")
    e(f"s_lshl_b32 s{S_T3}, s{S_W}, 8")
    e(f"s_add_u32 s{S_WOB}, s{S_WOB}, s{S_T3}")

    def kslot(par):
        return 2 * (par ^ 1)

    def k_reads(par, slot=None):
        if slot is None:
            slot = kslot(par)
        out = []
        for kt in range(2):
            for s in range(4):
                d = A_KF + par * 32 + (kt * 4 + s) * 4
                out.append(f"ds_read_b128 {ar(d)}, v{V_KRD+s} offset:{slot*SLOT + kt*4096}")
        return out

    def v_reads(par, slot=None):
        if slot is None:
            slot = kslot(par) + 1
        out = []
        for t in range(8):
            for hf in range(2):
                d = V_VF + par * 32 + t * 4 + hf * 2
                out.append(f"ds_read_b64_tr_b16 v[{d}:{d+1}], v{V_VRD+t} offset:{slot*SLOT + hf*4096}")
        return out

    A_XF = 0
    A_WF = 80
    QACC = V_Q

    def qreads(n):
        out = []
        xb = (n % 3) * 10240
        xf = A_XF + (n & 1) * 40
        wf = A_WF + (n & 1) * 32
        for ks in range(2):
            for tp in range(4):
                sp, par = tp >> 1, tp & 1
                for hf in range(2):
                    off = wslot(n) * SLOT + hf * 2048 + 8 * par
                    d = wf + (ks * 4 + tp) * 4 + hf * 2
                    out.append(f"ds_read_b64_tr_b16 a[{d}:{d+1}], v{WR + ks*2 + sp} offset:{off}")
            for j in range(5):
                d = xf + (ks * 5 + j) * 4
                out.append(f"ds_read_b128 {ar(d)}, v{XR+ks} offset:{xb + j*2048}")
        return out

    def qmfma(n):
        out = []
        xf = A_XF + (n & 1) * 40
        wf = A_WF + (n & 1) * 32
        for ks in range(2):
            for j in range(5):
                for tp in range(4):
                    d = QACC + (tp * 5 + j) * 4
                    cc = "0" if (n == 0 and ks == 0) else vr(d)
                    out.append(f"v_mfma_f32_16x16x32_bf16 {vr(d)}, {ar(wf + (ks*4+tp)*4)}, {ar(xf + (ks*5+j)*4)}, {cc}")
        return out

    def refill(n):
        out = []
        if n == 2:
            out.append((by_role(dma_kv("V", 0, goff_imm=0), warm_loads(range(8))), "V0", 8))
        if n + 3 < 8:
            out.append((chunk(n + 3), f"C{n+3}", 11))
        if n == 5:
            out.append((by_role(dma_kv("K", 0, goff_imm=8192) + dma_kv("V", 1, goff_imm=8192),
                                dma_half("K", 1, goff_imm=8192) + dma_half("V", 1, goff_imm=8192) + dma_half("K", 0, goff_imm=2 * 8192) + warm_loads((4, 0, 1, 2), S_WOX)), "K1", 16))
        if n == 6:
            out.append((by_role(dma_kv("K", 2, goff_imm=2 * 8192), wo_chunk(0, S_RING, 2 * SLOT)), "K2", 8))
        return out

    wait_tag("C0")
    stamp("c0")
    e("s_barrier")
    for l in qreads(0):
        e(l)
    e("s_waitcnt lgkmcnt(0)")
    e("s_barrier")
    for r, tag, cnt in refill(0):
        for l in r:
            put(l)
        issue(tag, cnt)
    for n in range(8):
        M = qmfma(n)
        if n + 1 < 8:
            wait_tag(f"C{n+1}")
            R = qreads(n + 1)
            if n + 1 == 2:
                wait_tag("K0")
                R = R + k_reads(0, slot=0)
            if n + 1 == 5:
                wait_tag("V0")
                R = R + v_reads(0, slot=0)
            stamp(f"c{n+1}")
            e("s_barrier")
            interleave(M[:20], R)
            e("s_waitcnt lgkmcnt(0)")
            e("s_barrier")
            rr = refill(n + 1)
            plain = [l for x in rr if not x[0][0].startswith("s_cmp_eq") for l in x[0]]
            first = True
            for x in rr:
                if x[0][0].startswith("s_cmp_eq"):
                    for l in x[0]:
                        put(l)
            interleave(M[20:], plain)
            for _, tag, cnt in rr:
                issue(tag, cnt)
        else:
            Z = [f"v_accvgpr_write_b32 a{i}, 0" for i in list(range(0, 40)) + list(range(80, 112))]
            interleave(M, Z)
    stamp("qdone")
    for i in list(range(40, 80)) + list(range(112, 144)):
        e(f"v_accvgpr_write_b32 a{i}, 0")
    e(f"v_add_u32 v{T}, s{S_RING}, v{V_L16}")
    e(f"v_add_u32 v{T+1}, s{S_MISC}, v{V_L16}")
    e(f"v_add_u32 v{T+2}, s{S_PRING}, v{V_L16}")
    e(f"v_add_u32 v{T+3}, s{S_PMISC}, v{V_L16}")
    for sp in range(2):
        for j in range(5):
            qd = V_Q + (sp * 5 + j) * 4
            for par in range(2):
                a = QACC + ((2 * sp + par) * 5 + j) * 4
                e(f"v_pk_mul_f32 v[{a}:{a+1}], v[{a}:{a+1}], s[{S_C2}:{S_C2+1}]")
                e(f"v_pk_mul_f32 v[{a+2}:{a+3}], v[{a+2}:{a+3}], s[{S_C2}:{S_C2+1}]")
                e(f"v_cvt_pk_bf16_f32 v{qd+2*par}, v{a}, v{a+1}")
                e(f"v_cvt_pk_bf16_f32 v{qd+2*par+1}, v{a+2}, v{a+3}")
            f = sp * 5 + j
            if f < 8:
                e(f"ds_write_b128 v{T}, {vr(V_Q + f*4)} offset:{3*SLOT + f*1024}")
            else:
                e(f"ds_write_b128 v{T+1}, {vr(V_Q + f*4)} offset:{(f-8)*1024}")
    e("s_waitcnt lgkmcnt(0)")
    e("s_barrier")
    for f in range(10):
        if f < 8:
            e(f"ds_read_b128 {vr(V_Q + 40 + f*4)}, v{T+2} offset:{3*SLOT + f*1024}")
        else:
            e(f"ds_read_b128 {vr(V_Q + 40 + f*4)}, v{T+3} offset:{(f-8)*1024}")
    e("s_waitcnt lgkmcnt(0)")
    e("s_barrier")
    for l in wo_chunk(4, S_MISC, 0):
        e(l)
    if spread:
        xl = dma_kv("V", 3, goff_imm=2 * 8192)[0:3]
        if not ywarm:
            xl = warm_loads((0, 1, 2, 3, 5, 6, 7)) + xl
        yl = wo_chunk(1, S_RING, 3 * SLOT) + warm_loads((3, 5, 6, 7), S_WOX)
    else:
        xl = dma_kv("V", 3, goff_imm=2 * 8192) + warm_loads((0, 1, 2, 3, 5, 6, 7))
        yl = wo_chunk(1, S_RING, 3 * SLOT) + warm_loads((2, 3, 5, 6, 7, 5, 6))
    for l in by_role(xl, yl, eq=False):
        put(l)
    e(f"s_mov_b32 s{S_KOFF}, {3*8192}")
    e(f"s_add_u32 s{S_VOFF}, s{S_HOFF}, {2*8192}")
    e(f"s_mov_b32 s{S_CNT}, 0")

    def qk(par, j, sb):
        out = []
        for kt in range(2):
            d = V_S + sb * 8 + kt * 4
            for s in range(4):
                cc = vr(V_NM + j * 4) if s == 0 else vr(d)
                out.append(f"v_mfma_f32_16x16x32_bf16 {vr(d)}, {ar(A_KF + par*32 + (kt*4+s)*4)}, {vr(V_Q + (s*5+j)*4)}, {cc}")
        return out

    def pv(par, j, pb):
        out = []
        for t in range(8):
            d = A_O + (t * 5 + j) * 4
            out.append(f"v_mfma_f32_16x16x32_bf16 {ar(d)}, {vr(V_VF + par*32 + t*4)}, {vr(V_P + pb*4)}, {ar(d)}")
        d = A_L + j * 4
        out.append(f"v_mfma_f32_16x16x32_bf16 {ar(d)}, {vr(V_ONES)}, {vr(V_P + pb*4)}, {ar(d)}")
        return out

    stamp("loop")
    for l in qk(0, 0, 0):
        e(l)
    e(f"s_cmp_eq_u32 s{S_ISA}, 1")
    e("s_nop 5")
    e("s_cbranch_scc0 L_preX")
    e(f"s_add_u32 s{S_KOFF}, s{S_KOFF}, s{S_HOFF}")
    e("s_branch L_loopY")

    SPREAD = [(0, 5, "V", 1), (0, 8, "V", 2), (0, 11, "V", 3), (0, 15, "V", 4),
              (1, 6, "V", 5), (1, 10, "V", 6), (1, 14, "V", 7),
              (2, 5, "K", 0), (2, 9, "K", 1), (2, 15, "K", 2),
              (3, 5, "K", 3), (3, 10, "K", 4), (3, 15, "K", 5),
              (4, 5, "K", 6), (4, 9, "K", 7), (4, 15, "V", 0)]
    seq = []
    marks = {}
    for it in range(6):
        for stp in range(5):
            if stp == 1:
                marks[("K", it)] = len(seq)
            if stp == 3:
                marks[("V", it)] = len(seq)
            for (st_, pos, which, idx) in sorted([x for x in SPREAD if x[0] == stp], key=lambda x: x[1]):
                tile = it + 3 if (which == "K" or st_ == 4) else it + 2
                seq.append((which, tile))
    it = 4
    lastK = max(i for i, x in enumerate(seq) if x == ("K", it + 1))
    lastV = max(i for i, x in enumerate(seq) if x == ("V", it + 1))
    NK = marks[("K", it)] - 1 - lastK
    NV = marks[("V", it)] - 1 - lastV
    print("spread waits", NK, NV)

    def main_loop(R, nt):
        slow_blocks = []

        def sm(j, sb, uid):
            s = V_S + sb * 8
            p = V_P + sb * 4
            t0, t1 = V_T, V_T + 1
            ex = [f"v_exp_f32 v{s+i}, v{s+i}" for i in range(8)]
            cv = [f"v_cvt_pk_bf16_f32 v{p+i}, v{s+2*i}, v{s+2*i+1}" for i in range(4)]
            G = [[f"v_max3_f32 v{t0}, v{s}, v{s+1}, v{s+2}", f"v_max3_f32 v{t1}, v{s+3}, v{s+4}, v{s+5}"],
                 [f"v_max3_f32 v{t0}, v{t0}, v{s+6}, v{s+7}", f"v_max_f32 v{t0}, v{t0}, v{t1}"],
                 [f"v_cmp_lt_f32 vcc, s{S_THRESH}, v{t0}", f"s_cbranch_vccnz L_slow{R}{uid}", f"L_ret{R}{uid}:"],
                 [ex[0]], [ex[1]], [], [ex[2]], [ex[3]], [cv[0]], [ex[4]], [ex[5]], [cv[1]], [ex[6]], [ex[7]], [cv[2]], [], [cv[3]]]
            slow_blocks.append((uid, j, sb))
            return G

        g.lab(f"L_loop{R}")
        hooks = []
        for par in range(2):
            for j in range(5):
                u = par * 5 + j
                sb = u & 1
                mq = qk(par, j + 1, sb ^ 1) if j < 4 else qk(par ^ 1, 0, sb ^ 1)
                mp = pv(par, j - 1, sb ^ 1) if j > 0 else pv(par ^ 1, 4, sb ^ 1)
                M = mq + mp
                G = sm(j, sb, u)
                extra = [[] for _ in range(17)]

                def place_dma(d):
                    extra[5] += d[0:3]
                    extra[8] += [d[3]]
                    extra[9] += [d[4]]
                    extra[11] += [d[5]]
                    extra[12] += d[6:8]
                    extra[13] += [d[8]]
                    extra[14] += [d[9]]
                    extra[15] += [d[10]]
                    extra[16] += [d[11]]

                def hook(c, slot, cnt):
                    nm = f"L_hk{R}{c}"
                    extra[3] += [f"s_cmp_eq_u32 s{S_CNT}, {cnt}", f"s_cbranch_scc1 {nm}", f"{nm}_ret:"]
                    hooks.append((nm, c, slot))

                if par == 1 and j == 0:
                    extra[0] += [f"s_mov_b32 s{S_THRESH}, {f2u(THR_T):#x}", f"s_mov_b32 s{S_DMIN}, 0"]
                if R == "X" and not spread:
                    if j == 1:
                        extra[0] = ["s_waitcnt vmcnt(24)"]
                        r = k_reads(par ^ 1)
                        for i, pos in enumerate((5, 5, 8, 8, 11, 11, 15, 15)):
                            extra[pos].append(r[i])
                    if j == 2:
                        extra[0] = ["s_waitcnt lgkmcnt(0)"]
                        if par == 1:
                            hook(0, 2, 6)
                        else:
                            hook(2, 0, 7)
                        place_dma(dma_kv("K", kslot(par ^ 1), nt=nt))
                    if j == 3:
                        extra[0] = ["s_waitcnt vmcnt(24)"]
                        r = v_reads(par ^ 1)
                        for i in range(16):
                            extra[1 + i].append(r[i])
                    if j == 4:
                        extra[0] = ["s_waitcnt lgkmcnt(0)"]
                        if par == 1:
                            hook(1, 3, 6)
                        else:
                            hook(3, 1, 7)
                        place_dma(dma_kv("V", kslot(par ^ 1) + 1, nt=nt))
                        extra[16] += [f"s_add_u32 s{S_KOFF}, s{S_KOFF}, 8192"]
                elif R == "X":
                    for (st_, pos, which, idx) in SPREAD:
                        if st_ != j:
                            continue
                        if which == "K":
                            slot = kslot(par ^ 1)
                            so = S_KOFF
                        else:
                            late = (st_ < 4)
                            slot = (kslot(par) + 1) if late else (kslot(par ^ 1) + 1)
                            so = S_VOFF
                        half, i = idx >> 2, idx & 3
                        s_ = S_K if which == "K" else S_V
                        vo = V_OFFK + i if which == "K" else V_OFFV + (i & 1)
                        pre = [f"s_add_u32 m0, s{S_DRING}, {slot*SLOT + half*4096}"]
                        if half:
                            pre.append(f"s_add_u32 s{S_T3}, s{so}, 4096")
                            sreg = S_T3
                        else:
                            sreg = so
                        extra[pos - 1] += pre
                        extra[pos] += [f"buffer_load_dwordx4 v{vo}, {srd(s_)}, s{sreg} offen offset:{i*1024} {nt} lds"]
                        if which == "K" and idx == 7:
                            extra[pos] += [f"s_add_u32 s{S_KOFF}, s{S_KOFF}, 8192"]
                        if which == "V" and idx == 7:
                            extra[pos] += [f"s_add_u32 s{S_VOFF}, s{S_VOFF}, 8192"]
                    if j == 1:
                        extra[0] = [f"s_waitcnt vmcnt({NK})"] + extra[0]
                        r = k_reads(par ^ 1)
                        for i, pos in enumerate((5, 5, 8, 8, 11, 11, 15, 15)):
                            extra[pos].append(r[i])
                    if j == 2:
                        extra[0] = ["s_waitcnt lgkmcnt(0)"] + extra[0]
                        if par == 1:
                            hook(0, 2, 6)
                        else:
                            hook(2, 0, 7)
                    if j == 3:
                        extra[0] = [f"s_waitcnt vmcnt({NV})"] + extra[0]
                        r = v_reads(par ^ 1)
                        for i in range(16):
                            extra[1 + i].append(r[i])
                    if j == 4:
                        extra[0] = ["s_waitcnt lgkmcnt(0)"] + extra[0]
                        if par == 1:
                            hook(1, 3, 6)
                        else:
                            hook(3, 1, 7)
                else:
                    if j == 1:
                        extra[0] = [f"s_waitcnt vmcnt({8 + 4*pf})", "s_barrier"]
                        r = k_reads(par ^ 1, slot=par ^ 1)
                        for i, pos in enumerate((1, 1, 5, 5, 8, 8, 11, 11)):
                            extra[pos].append(r[i])
                        if par == 1:
                            extra[3] += [f"s_cmp_eq_u32 s{S_CNT}, 7", "s_cbranch_scc1 L_hkYW", "L_hkYW_ret:"]
                        d = dma_half("V", par, nt=nt)
                        extra[12] += d[0:3]
                        extra[14] += [d[3]]
                        extra[15] += [d[4]]
                        extra[16] += [d[5], f"s_add_u32 s{S_VOFF}, s{S_VOFF}, 8192"]
                    if j == 2:
                        extra[12] += ["s_waitcnt lgkmcnt(0)"]
                    if j == 3:
                        extra[0] = [f"s_waitcnt vmcnt({8 + 2*pf})", "s_barrier"]
                        r = v_reads(par ^ 1, slot=par ^ 1)
                        for i in range(16):
                            extra[1 + i].append(r[i])
                    if j == 4:
                        if par == 1:
                            extra[1] += [f"s_cmp_eq_u32 s{S_CNT}, 6", "s_cbranch_scc1 L_hkYD", "L_hkYD_ret:"]
                        d = dma_half("K", par ^ 1, nt=nt)
                        extra[3] += d[0:3]
                        extra[5] += [d[3]]
                        extra[6] += [d[4]]
                        extra[8] += [d[5], f"s_add_u32 s{S_KOFF}, s{S_KOFF}, 8192"]
                        if pf:
                            h = helper(pf)
                            for i, l in enumerate(h):
                                extra[min(16, 9 + i)].append(l)
                        extra[16] += ["s_waitcnt lgkmcnt(0)"]
                g.c(f"---- {R} step par={par} j={j}")
                for i in range(17):
                    if i == 0:
                        for x in extra[0]:
                            put(x)
                    e(M[i])
                    for x in G[i]:
                        put(x)
                    if i > 0:
                        for x in extra[i]:
                            put(x)
        e(f"s_add_u32 s{S_CNT}, s{S_CNT}, 1")
        e(f"s_cmp_lt_u32 s{S_CNT}, 8")
        e(f"s_cbranch_scc1 L_loop{R}")
        if R == "X" and defer:
            e(f"s_cmp_lg_u32 s{S_W}, 0")
            e("s_cbranch_scc1 L_epi")
            e(f"v_add_u32 v{V_XF}, 1, v{V_XF}")
            e("s_mov_b64 exec, 1")
            e(f"buffer_store_dword v{V_XF}, v{V_XF+1}, {srd(S_WS)}, s{S_XFO} offen sc1")
            e("s_mov_b64 exec, -1")
        if R == "Y":
            e(f"s_waitcnt vmcnt({8 + 2*pf})")
        e("s_branch L_epi")
        if R == "Y":
            g.lab("L_hkYD")
            e(f"s_mov_b32 s{S_K+2}, 0")
            e(f"s_mov_b32 s{S_V+2}, 0")
            e(f"s_mov_b32 s{S_KDST}, 0x30000")
            e(f"s_mov_b32 s{S_VDST}, 0x30000")
            e("s_branch L_hkYD_ret")
            g.lab("L_hkYW")
            for l in wo_chunk(2, S_RING, 0) + wo_chunk(3, S_RING, SLOT):
                e(l)
            e("s_branch L_hkYW_ret")
        for nm, c, slot in hooks:
            g.lab(nm)
            if c == 0:
                e(f"s_mov_b32 s{S_K+2}, 0")
                e(f"s_mov_b32 s{S_V+2}, 0")
                e(f"s_mov_b32 s{S_DRING}, 0x30000")
            for l in wo_chunk(c, S_RING, slot * SLOT):
                e(l)
            e(f"s_branch {nm}_ret")
        for uid, j, sb in slow_blocks:
            t0, t1, t2, t3 = V_T, V_T + 1, V_T + 2, V_T + 3
            s = V_S + sb * 8
            g.lab(f"L_slow{R}{uid}")
            e(f"v_mov_b32 v{t1}, v{t0}")
            e("s_nop 1")
            e(f"v_permlane32_swap_b32 v{t0}, v{t1}")
            e(f"v_max_f32 v{t0}, v{t0}, v{t1}")
            e(f"v_mov_b32 v{t1}, v{t0}")
            e("s_nop 1")
            e(f"v_permlane16_swap_b32 v{t0}, v{t1}")
            e(f"v_max_f32 v{t0}, v{t0}, v{t1}")
            e(f"v_max_f32 v{t0}, s{S_DMIN}, v{t0}")
            e(f"v_max_f32 v{t2}, 0, v{t0}")
            e(f"v_exp_f32 v{t2}, -v{t2}")
            e(f"v_sub_f32 v{V_NM+4*j}, v{V_NM+4*j}, v{t0}")
            for i in range(8):
                e(f"v_sub_f32 v{s+i}, v{s+i}, v{t0}")
            for i in range(1, 4):
                e(f"v_mov_b32 v{V_NM+4*j+i}, v{V_NM+4*j}")
            regs = [A_O + (t * 5 + j) * 4 + r for t in range(8) for r in range(4)] + [A_L + j * 4 + r for r in range(4)]
            for k in range(0, 36, 2):
                e(f"v_accvgpr_read_b32 v{t1}, a{regs[k]}")
                e(f"v_accvgpr_read_b32 v{t3}, a{regs[k+1]}")
                e(f"v_mul_f32 v{t1}, v{t1}, v{t2}")
                e(f"v_mul_f32 v{t3}, v{t3}, v{t2}")
                e(f"v_accvgpr_write_b32 a{regs[k]}, v{t1}")
                e(f"v_accvgpr_write_b32 a{regs[k+1]}, v{t3}")
            e("s_nop 1")
            e(f"s_branch L_ret{R}{uid}")

    g.lab("L_preX")
    e(f"s_mov_b32 s{S_VOFF}, {2*8192}")
    main_loop("X", nt_x)
    main_loop("Y", nt_y)

    g.lab("L_epi")
    q.clear()
    done[0] = -1
    for c in range(4):
        issue(f"W{c}", 8)
    WFA, WFB = A_KF, A_KF + 32
    WFC = [160 + 4 * k for k in range(5)] + [244 + 4 * k for k in range(3)]
    FA = [WFA + 4 * k for k in range(8)]
    FB = [WFB + 4 * k for k in range(8)]

    def w_reads(off, dst, tiles=range(8), abase=V_WRD):
        out = []
        for k, t in enumerate(tiles):
            for hf in range(2):
                d = dst[k] + hf * 2
                out.append(f"ds_read_b64_tr_b16 a[{d}:{d+1}], v{abase+t} offset:{off + hf*4096}")
        return out

    EA, EP, EM, EMP, EH = 1, 2, 3, 4, 5
    W4A = 8
    X0 = [wait_str("W1")] + w_reads(2 * SLOT, FA) + w_reads(3 * SLOT, FB)
    X0 += [f"v_add_u32 v{EA}, s{S_RING}, v{V_L16}", f"v_add_u32 v{EP}, s{S_PRING}, v{V_L16}",
           f"v_lshlrev_b32 v{EH}, 2, v0", f"v_add_u32 v{EM}, s{S_RING}, v{EH}", f"v_add_u32 v{EMP}, s{S_PRING}, v{EH}",
           f"v_add_u32 v{EH}, 0x10000, v{V_L16}", f"s_sub_u32 s{S_T3}, s{S_MISC}, s{S_RING}"]
    X0 += [f"v_add_u32 v{W4A+t}, s{S_T3}, v{V_WRD+t}" for t in range(8)]
    e("s_nop 1")
    interleave(pv(1, 4, 1), X0)
    stamp("attn")
    VL = V_S
    e("s_nop 3")
    for j in range(5):
        e(f"v_accvgpr_read_b32 v{VL+j}, a{A_L + j*4}")
    wait_tag("W2")
    for l in w_reads(0, WFC):
        e(l)
    e("s_waitcnt lgkmcnt(0)")
    for f in range(20):
        off = 2 * SLOT + f * 1024 if f < 16 else (f - 16) * 1024
        e(f"ds_write_b128 v{EA}, {ar(A_O + 80 + f*4)} offset:{off}")
    for j in range(5):
        e(f"ds_write_b32 v{EM}, v{V_NM+4*j} offset:{4096 + j*256}")
        e(f"ds_write_b32 v{EM}, v{VL+j} offset:{4096 + (5+j)*256}")
    e("s_waitcnt lgkmcnt(0)")
    e("s_barrier")
    stamp("b1")
    RX = V_Q
    for j in range(5):
        e(f"ds_read_b32 v{VL+5+j}, v{EMP} offset:{4096 + j*256}")
        e(f"ds_read_b32 v{VL+10+j}, v{EMP} offset:{4096 + (5+j)*256}")
    for f in range(20):
        off = 2 * SLOT + f * 1024 if f < 16 else (f - 16) * 1024
        e(f"ds_read_b128 {vr(RX + f*4)}, v{EP} offset:{off}")
    OWN = V_VF
    for i in range(64):
        e(f"v_accvgpr_read_b32 v{OWN+i}, a{A_O+i}")
    e("s_waitcnt lgkmcnt(15)")
    SC = V_T
    ta, tb, tc = V_P, V_P + 1, V_P + 2
    for j in range(5):
        e(f"v_min_f32 v{ta}, v{V_NM+4*j}, v{VL+5+j}")
        e(f"v_sub_f32 v{tb}, v{ta}, v{V_NM+4*j}")
        e(f"v_sub_f32 v{tc}, v{ta}, v{VL+5+j}")
        e(f"v_exp_f32 v{tb}, v{tb}")
        e(f"v_exp_f32 v{tc}, v{tc}")
        e("s_nop 0")
        e(f"v_mul_f32 v{ta}, v{tb}, v{VL+j}")
        e(f"v_fma_f32 v{ta}, v{tc}, v{VL+10+j}, v{ta}")
        e(f"v_rcp_f32 v{ta}, v{ta}")
        e("s_nop 0")
        e(f"v_mul_f32 v{SC+2*j}, v{tb}, v{ta}")
        e(f"v_mul_f32 v{SC+2*j+1}, v{tc}, v{ta}")
    OWN2 = V_NM
    for i in range(16):
        e(f"v_accvgpr_read_b32 v{OWN2+i}, a{A_O+64+i}")
    e("s_waitcnt lgkmcnt(0)")
    for sp in range(2):
        for j in range(5):
            od = RX + (sp * 5 + j) * 4
            for par in range(2):
                f = (2 * sp + par) * 5 + j
                r = RX + f * 4
                o = OWN + f * 4 if f < 16 else OWN2 + (f - 16) * 4
                sc = f"v[{SC+2*j}:{SC+2*j+1}]"
                e(f"v_pk_mul_f32 v[{r}:{r+1}], v[{r}:{r+1}], {sc} op_sel:[0,1] op_sel_hi:[1,1]")
                e(f"v_pk_mul_f32 v[{r+2}:{r+3}], v[{r+2}:{r+3}], {sc} op_sel:[0,1] op_sel_hi:[1,1]")
                e(f"v_pk_fma_f32 v[{r}:{r+1}], v[{o}:{o+1}], {sc}, v[{r}:{r+1}] op_sel_hi:[1,0,1]")
                e(f"v_pk_fma_f32 v[{r+2}:{r+3}], v[{o+2}:{o+3}], {sc}, v[{r+2}:{r+3}] op_sel_hi:[1,0,1]")
                e(f"v_cvt_pk_bf16_f32 v{od+2*par}, v{r}, v{r+1}")
                e(f"v_cvt_pk_bf16_f32 v{od+2*par+1}, v{r+2}, v{r+3}")
            e(f"ds_write_b128 v{EP}, {vr(od)} offset:{2*SLOT + (sp*5+j)*1024}")
    e("s_waitcnt lgkmcnt(0)")
    e("s_barrier")
    stamp("b2")
    A_OF = 0
    for wp in range(4):
        rg = wp ^ 1
        va = V_L16 if rg < 2 else EH
        for f in range(10):
            e(f"ds_read_b128 {ar(A_OF + (wp*10+f)*4)}, v{va} offset:{(rg & 1)*RING + 2*SLOT + f*1024}")
    S_PB = S_T2
    e(f"s_xor_b32 s{S_PB}, s{S_ISA}, 1")
    e(f"s_lshl_b32 s{S_PB}, s{S_PB}, 3")
    e(f"s_add_u32 s{S_PB}, s{S_PB}, s{S_B}")
    e(f"s_lshl_b32 s{S_PB}, s{S_PB}, 4")
    e(f"s_add_u32 s{S_PB}, s{S_PB}, s{S_P}")
    e(f"s_mul_i32 s{S_PB}, s{S_PB}, {PART}")
    e(f"s_mul_i32 s{S_T3}, s{S_W}, 20480")
    e(f"s_add_u32 s{S_PB}, s{S_PB}, s{S_T3}")
    e(f"v_add_u32 v{V_F0}, 1, v{V_F0}")
    e("s_waitcnt lgkmcnt(0)")
    e("s_barrier")
    stamp("comb")
    YACC = 40
    PK = 200

    def ymfma(c, wf, tiles=range(8), first=False):
        out = []
        for k, t in enumerate(tiles):
            for j in range(5):
                d = YACC + (t * 5 + j) * 4
                cc = "0" if first else vr(d)
                out.append(f"v_mfma_f32_16x16x32_bf16 {vr(d)}, {ar(wf[k])}, {ar(A_OF + (c*5+j)*4)}, {cc}")
        return out

    interleave(ymfma(0, FA, first=True), wo_chunk(5, S_RING, 2 * SLOT) + wo_chunk(6, S_RING, 3 * SLOT) + wo_chunk(7, S_RING, 0))
    issue("W5", 8)
    issue("W6", 8)
    issue("W7", 8)
    wait_tag("W3")
    interleave(ymfma(1, FB), w_reads(1 * SLOT, FA), end=24)
    def u_reads(u, dst):
        out = []
        tl = (2 * u, 2 * u + 1)
        out += w_reads(0, dst[0:2], tiles=tl, abase=W4A)
        out += w_reads(2 * SLOT, dst[2:4], tiles=tl)
        out += w_reads(3 * SLOT, dst[4:6], tiles=tl)
        out += w_reads(0, dst[6:8], tiles=tl)
        return out

    def u_mfma(u, src):
        out = []
        for cc in range(4):
            out += ymfma(4 + cc, src[2 * cc:2 * cc + 2], tiles=(2 * u, 2 * u + 1))
        return out

    def u_store(u):
        out = []
        for j in range(5):
            pk = PK + (j & 1) * 4
            for par in range(2):
                a = YACC + ((2 * u + par) * 5 + j) * 4
                out.append(f"v_cvt_pk_bf16_f32 v{pk+2*par}, v{a}, v{a+1}")
                out.append(f"v_cvt_pk_bf16_f32 v{pk+2*par+1}, v{a+2}, v{a+3}")
            out.append(f"s_add_u32 s{S_T3}, s{S_PB}, {(u*5+j)*1024}")
            out.append(f"buffer_store_dwordx4 {vr(pk)}, v{V_L16}, {srd(S_WS)}, s{S_T3} offen sc1")
        return out

    def flag(u):
        return [f"s_mov_b64 exec, {1 << u}",
                f"buffer_store_dword v{V_F0}, v{V_FOFF}, {srd(S_WS)}, s{S_FLG} offen sc1",
                "s_mov_b64 exec, -1"]

    for l in ymfma(2, WFC):
        e(l)
    e("s_waitcnt lgkmcnt(0)")
    w7 = wait_str("W7")
    stamp("y2")
    interleave(ymfma(3, FA), [w7] + u_reads(0, FB), start=20)
    stamp("y3")
    if defer:
        e(f"s_cmp_eq_u32 s{S_ISA}, 0")
        e("s_cbranch_scc1 L_dfr_done")
        e(f"s_mov_b32 s{S_CNT}, 0")
        g.lab("L_dfr")
        e(f"buffer_load_dword v{V_T}, v{V_XF+1}, {srd(S_WS)}, s{S_XFO} offen sc1")
        e("s_waitcnt vmcnt(0)")
        e(f"v_cmp_ne_u32 vcc, v{V_XF}, v{V_T}")
        e("s_cbranch_vccnz L_dfr_done")
        e("s_sleep 2")
        e(f"s_add_u32 s{S_CNT}, s{S_CNT}, 1")
        e(f"s_cmp_lt_u32 s{S_CNT}, {defer_max}")
        e("s_cbranch_scc1 L_dfr")
        g.lab("L_dfr_done")
    for u in range(4):
        src = FB if u % 2 == 0 else WFC
        nxt = WFC if u % 2 == 0 else FB
        e("s_waitcnt lgkmcnt(0)")
        X = []
        if u + 1 < 4:
            X += u_reads(u + 1, nxt)
        if u >= 1:
            X = X[:6] + u_store(u - 1) + X[6:]
        interleave(u_mfma(u, src), X, start=3, end=36)
        if u >= 1:
            issue(f"S{u-1}", 5)
        if u >= 2:
            wait_tag(f"S{u-2}")
            for l in flag(u - 2):
                e(l)
            issue(f"F{u-2}", 1)
    stamp("yu")
    e("s_nop 7")
    for l in u_store(3):
        e(l)
    issue("S3", 5)
    wait_tag("S2")
    for l in flag(2):
        e(l)
    issue("F2", 1)
    wait_tag("S3")
    for l in flag(3):
        e(l)
    issue("F3", 1)
    stamp("prod")
    e("s_barrier")
    e(f"s_cmp_lg_u32 s{S_W}, 0")
    e("s_cbranch_scc1 L_nomark")
    e(f"v_mov_b32 v{T+1}, 1")
    e(f"v_mov_b32 v{T+2}, s2")
    e("s_mov_b64 exec, 1")
    e(f"buffer_store_byte v{T+1}, v{T+2}, {srd(S_DBG)}, 0 offen sc1")
    e("s_mov_b64 exec, -1")
    g.lab("L_nomark")
    e(f"s_cmp_eq_u32 s{S_ISA}, 0")
    e("s_cbranch_scc1 L_fin")
    e(f"v_lshrrev_b32 v{T+9}, 2, v{V_POFF}")
    e(f"v_and_b32 v{T+10}, 1, v{T+9}")
    e(f"v_lshrrev_b32 v{T+9}, 1, v{T+9}")
    e(f"v_lshl_add_u32 v{T+9}, v{T+10}, 4, v{T+9}")
    e(f"s_lshl_b32 s{S_T3}, s{S_B}, 5")
    e(f"v_add_u32 v{T+9}, s{S_T3}, v{T+9}")
    S_BR = S_CNT
    e(f"s_mov_b32 s{S_BR}, 0")
    e("s_mov_b32 s4, 0x00003f80")
    e("s_mov_b32 s5, 0x3f800000")
    e(f"v_and_b32 v{T+5}, 15, v0")
    e(f"v_lshrrev_b32 v{T+6}, 4, v0")
    e(f"v_lshlrev_b32 v{T+6}, 3, v{T+6}")
    e(f"v_lshl_add_u32 v{T+5}, v{T+5}, 11, v{T+6}")
    e(f"s_mul_i32 s6, s{S_B}, 163840")
    e(f"s_lshl_b32 s{S_T3}, s{S_P}, 6")
    e(f"s_add_u32 s6, s6, s{S_T3}")
    e(f"s_mul_i32 s7, s{S_W}, 10240")
    e(f"v_add_u32 v{T+7}, s7, v{V_L16}")
    e(f"s_lshl_b32 s7, s{S_W}, 11")
    e(f"v_add_u32 v{T+8}, s7, v{V_L16}")
    g.lab("L_cons")
    e(f"s_lshl_b32 s8, s{S_BR}, 3")
    e(f"s_add_u32 s8, s8, s{S_B}")
    e("s_lshl_b32 s8, s8, 4")
    e(f"s_add_u32 s9, s8, s{S_P}")
    e("s_lshl_b32 s9, s9, 6")
    e(f"s_add_u32 s9, s9, {FLAG_BASE}")
    e(f"s_lshl_b32 s10, s{S_W}, 2")
    e("s_add_u32 s10, s10, s8")
    e(f"s_mul_i32 s10, s10, {PART}")
    e(f"s_mul_i32 s11, s{S_P}, 5120")
    e("s_add_u32 s10, s10, s11")
    e(f"s_xor_b32 s13, s{S_BR}, 1")
    e("s_lshl_b32 s13, s13, 3")
    e("s_mov_b32 s14, 0")
    LD, AC = 80, 40
    for i in range(40):
        e(f"v_mov_b32 v{AC+i}, 0")
    g.lab("L_poll")
    e(f"buffer_load_dword v{T+3}, v{V_POFF}, {srd(S_WS)}, s9 offen sc1")
    e("s_waitcnt vmcnt(0)")
    e(f"v_cmp_eq_u32 vcc, v{V_C0}, v{T+3}")
    e("s_cbranch_vccz L_go")
    if poll_sleep:
        e(f"s_sleep {poll_sleep}")
    e("s_add_u32 s14, s14, 1")
    e("s_and_b32 s15, s14, 31")
    e("s_cbranch_scc1 L_poll")
    e(f"buffer_load_ubyte v{T+3}, v{T+9}, {srd(S_DBG)}, s13 offen sc1")
    e("s_waitcnt vmcnt(0)")
    e(f"v_cmp_eq_u32 vcc, 0, v{T+3}")
    e("s_cbranch_vccnz L_poll")
    g.lab("L_go")
    stamp("poll")
    for y in range(4):
        e(f"s_add_u32 s11, s10, {y*PART}")
        for j in range(5):
            if j < 4:
                e(f"buffer_load_dwordx4 {vr(LD + (y*5+j)*4)}, v{V_L16}, {srd(S_WS)}, s11 offen offset:{j*1024} sc1")
            else:
                e(f"s_add_u32 s11, s11, 4096")
                e(f"buffer_load_dwordx4 {vr(LD + (y*5+j)*4)}, v{V_L16}, {srd(S_WS)}, s11 offen sc1")
    for y in range(4):
        e(f"s_waitcnt vmcnt({15 - 5*y})")
        for j in range(5):
            for r in range(4):
                x = LD + (y * 5 + j) * 4 + r
                e(f"v_dot2c_f32_bf16 v{AC + j*8 + 2*r}, s4, v{x}")
                e(f"v_dot2c_f32_bf16 v{AC + j*8 + 2*r + 1}, s5, v{x}")
    e("s_nop 2")
    for j in range(5):
        for h2 in range(2):
            e(f"ds_write_b128 v{T+7}, {vr(AC + j*8 + h2*4)} offset:{(j*2+h2)*1024}")
    e(f"s_lshl_b32 s11, s{S_BR}, 10")
    e("s_add_u32 s11, s11, s6")
    e(f"s_lshl_b32 s12, s{S_W}, 15")
    e("s_add_u32 s12, s12, s11")
    e("s_waitcnt lgkmcnt(0)")
    e("s_barrier")

    def final_block(va, extra_off, soff):
        k = 0
        for w in range(4):
            for h2 in range(2):
                e(f"ds_read_b128 {vr(LD + k*4)}, v{va} offset:{w*10240 + h2*1024 + extra_off}")
                k += 1
        e("s_waitcnt lgkmcnt(0)")
        for i in range(8):
            h2, r = i >> 2, i & 3
            srcs = [LD + (kk * 2 + h2) * 4 + r for kk in range(4)]
            e(f"v_add_f32 v{AC+i}, v{srcs[0]}, v{srcs[1]}")
            e(f"v_add_f32 v{AC+8+i}, v{srcs[2]}, v{srcs[3]}")
        for i in range(8):
            e(f"v_add_f32 v{AC+i}, v{AC+i}, v{AC+8+i}")
        for i in range(4):
            e(f"v_cvt_pk_bf16_f32 v{AC+16+i}, v{AC+2*i}, v{AC+2*i+1}")
        e(f"buffer_store_dwordx2 v[{AC+16}:{AC+17}], v{T+5}, {srd(S_OUT)}, {soff} offen {out_pol}")
        e(f"buffer_store_dwordx2 v[{AC+18}:{AC+19}], v{T+5}, {srd(S_OUT)}, {soff} offen offset:32 {out_pol}")

    final_block(T + 8, 0, "s12")
    e(f"s_cmp_lg_u32 s{S_W}, 0")
    e("s_cbranch_scc1 L_skip4")
    e(f"s_add_u32 s12, s11, {4*32768}")
    final_block(T + 8, 4 * 2048, "s12")
    g.lab("L_skip4")
    e("s_barrier")
    e(f"v_mov_b32 v{V_C0}, v{V_C0+1}")
    e(f"s_add_u32 s{S_BR}, s{S_BR}, 1")
    e(f"s_cmp_lt_u32 s{S_BR}, 2")
    e("s_cbranch_scc1 L_cons")
    g.lab("L_fin")
    if stamps:
        e("s_waitcnt vmcnt(0)")
        stamp("end")
        n = len(stamps)
        e(f"s_lshl_b32 s{S_T1}, s2, 2")
        e(f"s_add_u32 s{S_T1}, s{S_T1}, s{S_W}")
        e(f"s_mul_i32 s{S_T1}, s{S_T1}, {n*8}")
        e(f"s_add_u32 s{S_T1}, s{S_T1}, {WS_BYTES - 256*4*n*8}")
        e("s_waitcnt lgkmcnt(0)")
        e("v_mov_b32 v8, 0")
        e("s_mov_b64 exec, 1")
        for k in range(n):
            e(f"v_mov_b32 v4, s{S_STAMP+2*k}")
            e(f"v_mov_b32 v5, s{S_STAMP+2*k+1}")
            e(f"buffer_store_dwordx2 v[4:5], v8, {srd(S_WS)}, s{S_T1} offen offset:{k*8}")
            e("s_nop 1")
    g.lab("L_end")
    e("s_endpgm")
    g.raw('.section .rodata,"a"')
    g.raw(".p2align 6")
    g.raw(f".amdhsa_kernel {NAME}_kernel")
    g.raw("  .amdhsa_next_free_vgpr 512")
    g.raw("  .amdhsa_next_free_sgpr 102")
    g.raw("  .amdhsa_accum_offset 256")
    g.raw("  .amdhsa_group_segment_fixed_size 0")
    g.raw("  .amdhsa_kernarg_size 104")
    g.raw("  .amdhsa_user_sgpr_count 2")
    g.raw("  .amdhsa_user_sgpr_kernarg_segment_ptr 1")
    g.raw("  .amdhsa_system_sgpr_workgroup_id_x 1")
    g.raw("  .amdhsa_float_denorm_mode_32 3")
    g.raw(".end_amdhsa_kernel")
    return g.text()


STAMPS = ["start", "c0", "qdone", "loop", "attn", "comb", "prod", "end"]
if __name__ == "__main__":
    t = gen()
    check(t)
    open("v5.s", "w").write(t)
    open("v5_st.s", "w").write(gen(stamps=STAMPS))
    open("v5_xw_st.s", "w").write(gen(stamps=STAMPS, ywarm=False))
```

```python
import sys, struct, math
from asmlib import Asm, check

NAME = "concat_heads__gqa_block_cached__mha_block_cached__near_ridge"
HDR = open("cdna_kernels/" + NAME + ".s.ref").read().split("; Override launch")[0]


def f2u(x):
    return struct.unpack("<I", struct.pack("<f", x))[0]


SCALE_C = math.log2(math.e) / math.sqrt(128.0)
THR_T = 8.0
WS_BYTES = 268435456
PART = 81920
FLAG_BASE = 32 * 1024 * 1024
XF_BASE = FLAG_BASE + 65536

S_X, S_WQ, S_K, S_V, S_WO, S_WS, S_OUT, S_DBG = 32, 36, 40, 44, 48, 52, 56, 60
S_W, S_PW, S_ISA, S_B, S_H0, S_RING, S_MISC, S_CNT, S_KOFF = 64, 65, 66, 67, 68, 69, 70, 72, 73
S_T0, S_T1, S_T2, S_T3 = 74, 75, 76, 77
S_PRING, S_PMISC, S_THRESH, S_DMIN = 78, 79, 80, 81
S_C2 = 82
S_DRING, S_P = 30, 31
S_ROT, S_X3, S_WOB, S_FLG = 3, 100, 101, 29
S_STAMP = 84
S_WOX = 24
S_PK, S_PV = 4, 8
S_HOFF, S_KDST, S_VDST, S_PFO, S_VOFF, S_KB, S_VB, S_XFO = 12, 13, 14, 15, 71, 16, 17, 18

V_OFFK = 1
V_OFFV = 5
V_L16 = 7
V_KRD = 8
V_VRD = 12
V_ONES = 20
V_OFFW = 24
V_WRD = 28
V_F0, V_FOFF, V_POFF = 36, 37, 38
V_Q = 40
V_S = 120
V_P = 136
V_VF = 144
V_NM = 208
V_T = 228
V_C0 = 244
V_XF = 246
A_O = 0
A_L = 160
A_KF = 180

RING = 32768
SLOT = 8192
MISC0 = 131072
NEG_INF = 0xff800000


def srd(n):
    return f"s[{n}:{n+3}]"


def vr(b, n=4):
    return f"v[{b}:{b+n-1}]"


def ar(b, n=4):
    return f"a[{b}:{b+n-1}]"


def gen(nt_x="nt", nt_y="", stamps=None, poll_sleep=1, warm=True, pf=0, pf_start=12, spread=True, defer=True, defer_max=400, out_pol="", ywarm=True, codewarm=False, early=True):
    g = Asm()
    e = g.e
    g.raw(HDR.rstrip("\n"))
    g.raw("; @launch grid=(256,1,1) block=(256,1,1) lds=163840")
    g.raw('.amdgcn_target "amdgcn-amd-amdhsa--gfx950"')
    g.raw(".text")
    g.raw(f".globl {NAME}_kernel")
    g.raw(".p2align 8")
    g.raw(f".type {NAME}_kernel,@function")
    g.lab(f"{NAME}_kernel")
    stamps = stamps or []

    def stamp(name):
        if name in stamps:
            k = stamps.index(name)
            e(f"s_memrealtime s[{S_STAMP+2*k}:{S_STAMP+2*k+1}]")

    def put(x):
        if x.endswith(":"):
            g.raw(x)
        else:
            e(x)

    def interleave(M, X, start=0, end=None):
        n = len(M) if end is None else end
        k = 0
        slots = max(1, n - start)
        for i, m in enumerate(M):
            put(m)
            if start <= i < n:
                tgt = (len(X) * (i - start + 1) + slots - 1) // slots
                while k < min(tgt, len(X)):
                    put(X[k]); k += 1
        while k < len(X):
            put(X[k]); k += 1

    T = V_T
    e("s_cmp_ge_u32 s2, 256")
    e("s_cbranch_scc1 L_end")
    stamp("start")
    e("s_load_dwordx16 s[4:19], s[0:1], 0")
    e("s_load_dwordx8 s[20:27], s[0:1], 64")
    e("s_load_dwordx2 s[28:29], s[0:1], 96")
    e("v_lshrrev_b32 v1, 6, v0")
    e("v_and_b32 v0, 63, v0")
    e(f"v_readfirstlane_b32 s{S_W}, v1")
    e(f"s_and_b32 s{S_T0}, s2, 7")
    e(f"s_lshr_b32 s{S_T1}, s2, 3")
    e(f"s_and_b32 s{S_ISA}, s{S_T1}, 1")
    e(f"s_lshr_b32 s{S_B}, s{S_T1}, 2")
    e(f"s_bfe_u32 s{S_T1}, s{S_T1}, 0x10001")
    e(f"s_lshl_b32 s{S_P}, s{S_T0}, 1")
    e(f"s_add_u32 s{S_P}, s{S_P}, s{S_T1}")
    e(f"s_lshl_b32 s{S_H0}, s{S_P}, 1")
    e(f"s_lshl_b32 s{S_ROT}, s{S_T1}, 2")
    e(f"s_add_u32 s{S_ROT}, s{S_ROT}, s{S_B}")
    e(f"s_and_b32 s{S_PW}, s{S_W}, 1")
    e(f"s_lshl_b32 s{S_RING}, s{S_W}, 15")
    e(f"s_mov_b32 s{S_DRING}, s{S_RING}")
    e(f"s_xor_b32 s{S_PRING}, s{S_RING}, {RING}")
    e(f"s_lshl_b32 s{S_MISC}, s{S_W}, 13")
    e(f"s_add_u32 s{S_MISC}, s{S_MISC}, {MISC0}")
    e(f"s_xor_b32 s{S_PMISC}, s{S_MISC}, 8192")
    e(f"s_lshl_b32 s{S_T1}, s{S_B}, 5")
    e(f"s_add_u32 s{S_T1}, s{S_T1}, s{S_H0}")
    e(f"s_lshr_b32 s{S_T2}, s{S_W}, 1")
    e(f"s_add_u32 s{S_T1}, s{S_T1}, s{S_T2}")
    e(f"s_lshl_b32 s{S_T2}, s{S_B}, 3")
    e(f"s_add_u32 s{S_T2}, s{S_T2}, s{S_T0}")
    e(f"s_cmp_eq_u32 s{S_ISA}, 1")
    e(f"s_cselect_b32 s{S_T1}, s{S_T2}, s{S_T1}")
    e(f"s_lshl_b32 s{S_T1}, s{S_T1}, 18")
    e(f"s_lshl_b32 s{S_T2}, s{S_PW}, 17")
    e(f"s_add_u32 s{S_T1}, s{S_T1}, s{S_T2}")
    e(f"s_mul_i32 s{S_T2}, s{S_B}, 81920")
    e(f"s_cmp_lt_u32 s{S_W}, 2")
    e(f"s_cselect_b32 s{S_X3}, 8, 64")
    e(f"s_add_u32 s{S_X3}, s{S_X3}, s{S_W}")
    OFFWQ, OFFX, XR, WR = V_S, V_S + 2, V_S + 3, V_S + 5
    e(f"v_lshrrev_b32 v{T}, 4, v0")
    e(f"v_and_b32 v{T+1}, 15, v0")
    e(f"v_lshlrev_b32 v{V_L16}, 4, v0")
    e(f"v_lshrrev_b32 v{T+2}, 5, v0")
    e(f"v_and_b32 v{T+3}, 31, v0")
    for i in range(2):
        e(f"v_add_u32 v{T+4}, {2*i}, v{T+2}")
        e(f"v_lshlrev_b32 v{T+4}, 2, v{T+4}")
        e(f"v_xor_b32 v{T+4}, v{T+4}, v{T+3}")
        e(f"v_lshlrev_b32 v{T+4}, 4, v{T+4}")
        e(f"v_lshl_add_u32 v{OFFWQ+i}, v{T+2}, 13, v{T+4}")
    e(f"s_lshl_b32 s{S_T3}, s{S_PW}, 2")
    e(f"v_add_u32 v{T+4}, s{S_T3}, v{T}")
    e(f"v_and_b32 v{T+5}, 7, v0")
    e(f"v_xor_b32 v{T+4}, v{T+4}, v{T+5}")
    e(f"v_lshlrev_b32 v{T+4}, 4, v{T+4}")
    e(f"v_lshrrev_b32 v{T+5}, 3, v0")
    e(f"v_lshl_add_u32 v{OFFX}, v{T+5}, 10, v{T+4}")
    for i in range(4):
        e(f"v_add_u32 v{T+2}, {4*i}, v{T}")
        e(f"v_xor_b32 v{T+2}, v{T+2}, v{T+1}")
        e(f"v_lshlrev_b32 v{T+2}, 4, v{T+2}")
        e(f"v_lshl_add_u32 v{V_OFFK+i}, v{T}, 8, v{T+2}")
    for i in range(2):
        e(f"v_add_u32 v{T+2}, {4*i}, v{T}")
        e(f"v_lshlrev_b32 v{T+2}, 1, v{T+2}")
        e(f"v_xor_b32 v{T+2}, v{T+2}, v{T+1}")
        e(f"v_lshlrev_b32 v{T+2}, 4, v{T+2}")
        e(f"v_lshl_add_u32 v{V_OFFV+i}, v{T}, 8, v{T+2}")
    e("s_waitcnt lgkmcnt(0)")
    e(f"s_cmp_eq_u32 s{S_ISA}, 1")
    e(f"s_cselect_b64 s[{S_X}:{S_X+1}], s[4:5], s[14:15]")
    e(f"s_cselect_b64 s[{S_WQ}:{S_WQ+1}], s[10:11], s[20:21]")
    e(f"s_cselect_b64 s[{S_K}:{S_K+1}], s[6:7], s[16:17]")
    e(f"s_cselect_b64 s[{S_V}:{S_V+1}], s[8:9], s[18:19]")
    e(f"s_cselect_b64 s[{S_WO}:{S_WO+1}], s[12:13], s[22:23]")
    e(f"s_add_u32 s{S_X}, s{S_X}, s{S_T2}")
    e(f"s_addc_u32 s{S_X+1}, s{S_X+1}, 0")
    e(f"s_add_u32 s{S_K}, s{S_K}, s{S_T1}")
    e(f"s_addc_u32 s{S_K+1}, s{S_K+1}, 0")
    e(f"s_add_u32 s{S_V}, s{S_V}, s{S_T1}")
    e(f"s_addc_u32 s{S_V+1}, s{S_V+1}, 0")
    e(f"s_mov_b32 s{S_X+2}, 81920")
    e(f"s_mov_b32 s{S_WQ+2}, 4194304")
    e(f"s_mov_b32 s{S_K+2}, 131072")
    e(f"s_mov_b32 s{S_V+2}, 131072")
    e(f"s_mov_b32 s{S_WO+2}, 4194304")
    e(f"s_mov_b32 s{S_WS}, s28")
    e(f"s_mov_b32 s{S_WS+1}, s29")
    e(f"s_mov_b32 s{S_WS+2}, {WS_BYTES}")
    e(f"s_mov_b32 s{S_OUT}, s24")
    e(f"s_mov_b32 s{S_OUT+1}, s25")
    e(f"s_mov_b32 s{S_OUT+2}, 1310720")
    e(f"s_mov_b32 s{S_DBG}, s26")
    e(f"s_mov_b32 s{S_DBG+1}, s27")
    e(f"s_mov_b32 s{S_DBG+2}, 256")
    for s_ in (S_X, S_WQ, S_K, S_V, S_WO, S_WS, S_OUT, S_DBG):
        e(f"s_mov_b32 s{s_+3}, 0x20000")

    e(f"s_lshl_b32 s{S_T3}, s{S_B}, 5")
    e(f"s_add_u32 s{S_T3}, s{S_T3}, s{S_H0}")
    e(f"s_lshl_b32 s{S_T3}, s{S_T3}, 18")
    e(f"s_add_u32 s{S_PK}, s16, s{S_T3}")
    e(f"s_addc_u32 s{S_PK+1}, s17, 0")
    e(f"s_add_u32 s{S_PV}, s18, s{S_T3}")
    e(f"s_addc_u32 s{S_PV+1}, s19, 0")
    e(f"s_mov_b32 s{S_PK+2}, 524288")
    e(f"s_mov_b32 s{S_PV+2}, 524288")
    e(f"s_mov_b32 s{S_PK+3}, 0x20000")
    e(f"s_mov_b32 s{S_PV+3}, 0x20000")
    e(f"s_mov_b32 s{S_WOX}, s22")
    e(f"s_mov_b32 s{S_WOX+1}, s23")
    e(f"s_mov_b32 s{S_WOX+2}, 4194304")
    e(f"s_mov_b32 s{S_WOX+3}, 0x20000")
    e(f"s_lshr_b32 s{S_HOFF}, s{S_W}, 1")
    e(f"s_lshl_b32 s{S_HOFF}, s{S_HOFF}, 12")
    e(f"s_lshl_b32 s{S_KB}, s{S_PW}, 15")
    e(f"s_add_u32 s{S_VB}, s{S_KB}, 0x10000")
    e(f"s_add_u32 s{S_KDST}, s{S_KB}, s{S_HOFF}")
    e(f"s_add_u32 s{S_VDST}, s{S_VB}, s{S_HOFF}")
    e(f"s_lshl_b32 s{S_PFO}, s{S_W}, 17")
    e(f"s_add_u32 s{S_PFO}, s{S_PFO}, {pf_start*8192}")
    e(f"s_cmp_eq_u32 s{S_ISA}, 1")
    e(f"s_cselect_b32 s{S_KB}, s{S_KB}, s{S_RING}")
    e(f"s_cselect_b32 s{S_VB}, s{S_VB}, s{S_RING}")

    q = []
    done = [-1]
    rolecnt = [0]

    def by_role(xl, yl, eq=True):
        nx = sum(1 for l in xl if l.startswith("buffer_"))
        ny = sum(1 for l in yl if l.startswith("buffer_"))
        assert nx == ny or not eq, (nx, ny)
        k = rolecnt[0]
        rolecnt[0] += 1
        return ([f"s_cmp_eq_u32 s{S_ISA}, 1", f"s_cbranch_scc1 L_ry{k}"] + xl + [f"s_branch L_re{k}", f"L_ry{k}:"] + yl + [f"L_re{k}:"])

    def dma_half(which, slot, goff_imm=None, nt=""):
        s_ = S_K if which == "K" else S_V
        dst = S_KDST if which == "K" else S_VDST
        so = S_KOFF if which == "K" else S_VOFF
        out = [f"s_add_u32 m0, s{dst}, {slot*SLOT}"]
        if goff_imm is not None:
            out.append(f"s_add_u32 s{S_T3}, s{S_HOFF}, {goff_imm}")
            so = S_T3
        else:
            out.append("s_nop 0")
        for i in range(4):
            vo = V_OFFK + i if which == "K" else V_OFFV + (i & 1)
            out.append(f"buffer_load_dwordx4 v{vo}, {srd(s_)}, s{so} offen offset:{i*1024} {nt} lds")
        return out

    def warm_loads(cs, sr=S_WO):
        out = [f"s_lshl_b32 s{S_CNT}, s{S_B}, 12", f"s_add_u32 s{S_CNT}, s{S_CNT}, s{S_WOB}"]
        for c in cs:
            out.append(f"s_add_u32 s{S_T3}, s{S_CNT}, {c*32768}")
            out.append(f"buffer_load_dwordx4 v[248:251], v{V_OFFW}, {srd(sr)}, s{S_T3} offen")
        return out

    def helper(n):
        out = []
        for i in range(n):
            out.append(f"buffer_load_dwordx4 v[248:251], v{V_L16}, {srd(S_PK)}, s{S_PFO} offen offset:{i*1024}")
            out.append(f"buffer_load_dwordx4 v[252:255], v{V_L16}, {srd(S_PV)}, s{S_PFO} offen offset:{i*1024}")
        out.append(f"s_add_u32 s{S_PFO}, s{S_PFO}, {n*1024}")
        return out

    def issue(tag, n=1):
        q.extend([tag] * n)

    def wait_str(tag):
        last = max(i for i, t in enumerate(q) if t == tag)
        n = len(q) - 1 - last
        if last <= done[0]:
            return None
        done[0] = last
        assert n <= 63, n
        return f"s_waitcnt vmcnt({n})"

    def wait_tag(tag):
        w = wait_str(tag)
        if w:
            e(w)

    def dma_kv(which, slot, goff_imm=None, nt=""):
        s_ = S_K if which == "K" else S_V
        out = []
        for half in range(2):
            out.append(f"s_add_u32 m0, s{S_DRING}, {slot*SLOT + half*4096}")
            if goff_imm is not None:
                out.append(f"s_mov_b32 s{S_T3}, {goff_imm + half*4096}")
            else:
                out.append(f"s_add_u32 s{S_T3}, s{S_KOFF}, {half*4096}")
            for i in range(4):
                vo = V_OFFK + i if which == "K" else V_OFFV + (i & 1)
                out.append(f"buffer_load_dwordx4 v{vo}, {srd(s_)}, s{S_T3} offen offset:{i*1024} {nt} lds")
        return out

    def wo_chunk(c, base_sreg, off):
        out = []
        for half in range(2):
            out.append(f"s_add_u32 m0, s{base_sreg}, {off + half*4096}")
            out.append(f"s_add_u32 s{S_T3}, s{S_WOB}, {c*32768 + half*16384}")
            for i in range(4):
                out.append(f"buffer_load_dwordx4 v{V_OFFW+i}, {srd(S_WO)}, s{S_T3} offen offset:{i*1024} lds")
        return out

    S_WC = S_T0
    e(f"s_lshl_b32 s{S_WC}, s{S_W}, 17")
    e(f"s_lshl_b32 s{S_T1}, s{S_H0}, 8")
    e(f"s_add_u32 s{S_WC}, s{S_WC}, s{S_T1}")
    S_KC = S_T1
    S_XW = S_T2
    e(f"s_lshl_b32 s{S_XW}, s{S_W}, 13")

    def wslot(n):
        return 1 + ((n + 1) % 3)

    def chunk(n):
        out = []
        out.append(f"s_add_u32 s{S_KC}, s{S_ROT}, {n}")
        out.append(f"s_and_b32 s{S_KC}, s{S_KC}, 7")
        out.append(f"s_lshl_b32 s{S_CNT}, s{S_KC}, 19")
        out.append(f"s_add_u32 s{S_CNT}, s{S_CNT}, s{S_WC}")
        for i in range(8):
            out.append(f"s_add_u32 m0, s{S_RING}, {wslot(n)*SLOT + i*1024}")
            out.append(f"s_add_u32 s{S_T3}, s{S_CNT}, {i*16384}")
            out.append(f"buffer_load_dwordx4 v{OFFWQ + (i&1)}, {srd(S_WQ)}, s{S_T3} offen lds")
        out.append(f"s_lshl_b32 s{S_KC}, s{S_KC}, 7")
        xb = MISC0 + (n % 3) * 10240
        for k in range(3):
            if k < 2:
                out.append(f"s_lshl_b32 s{S_CNT}, s{S_W}, 10")
                out.append(f"s_add_u32 m0, s{S_CNT}, {xb + k*4096}")
                out.append(f"s_add_u32 s{S_T3}, s{S_XW}, {k*32768}")
            else:
                out.append(f"s_lshl_b32 s{S_CNT}, s{S_X3}, 10")
                out.append(f"s_add_u32 m0, s{S_CNT}, {xb}")
                out.append(f"s_lshl_b32 s{S_T3}, s{S_X3}, 13")
            out.append(f"s_add_u32 s{S_T3}, s{S_T3}, s{S_KC}")
            out.append(f"buffer_load_dwordx4 v{OFFX}, {srd(S_X)}, s{S_T3} offen lds")
        return out

    stamp("pre")
    for n in range(3):
        for l in chunk(n):
            e(l)
        issue(f"C{n}", 11)
    for l in by_role(dma_kv("K", 0, goff_imm=0), dma_half("K", 0, goff_imm=0) + dma_half("V", 0, goff_imm=0)):
        put(l)
    issue("K0", 8)
    stamp("issued")
    e(f"s_xor_b32 s{S_FLG}, s{S_ISA}, 1")
    e(f"s_lshl_b32 s{S_FLG}, s{S_FLG}, 3")
    e(f"s_add_u32 s{S_FLG}, s{S_FLG}, s{S_B}")
    e(f"s_lshl_b32 s{S_FLG}, s{S_FLG}, 2")
    e(f"s_add_u32 s{S_FLG}, s{S_FLG}, s{S_W}")
    e(f"s_lshl_b32 s{S_FLG}, s{S_FLG}, 8")
    e(f"s_lshl_b32 s{S_T3}, s{S_P}, 2")
    e(f"s_add_u32 s{S_FLG}, s{S_FLG}, s{S_T3}")
    e(f"s_add_u32 s{S_FLG}, s{S_FLG}, {FLAG_BASE}")
    e(f"v_and_b32 v{T+2}, 3, v0")
    e(f"v_lshlrev_b32 v{V_FOFF}, 6, v{T+2}")
    e(f"buffer_load_dword v{V_F0}, v{V_FOFF}, {srd(S_WS)}, s{S_FLG} offen sc1")
    e(f"v_lshlrev_b32 v{T+2}, 2, v{T+2}")
    e(f"s_lshl_b32 s{S_T3}, s{S_W}, 4")
    e(f"v_add_u32 v{V_POFF}, s{S_T3}, v{T+2}")
    e(f"s_lshl_b32 s{S_T3}, s{S_B}, 4")
    e(f"s_add_u32 s{S_T3}, s{S_T3}, s{S_P}")
    e(f"s_lshl_b32 s{S_T3}, s{S_T3}, 6")
    e(f"s_add_u32 s{S_T3}, s{S_T3}, {FLAG_BASE}")
    e(f"buffer_load_dword v{V_C0}, v{V_POFF}, {srd(S_WS)}, s{S_T3} offen sc1")
    e(f"s_add_u32 s{S_T3}, s{S_T3}, 8192")
    e(f"buffer_load_dword v{V_C0+1}, v{V_POFF}, {srd(S_WS)}, s{S_T3} offen sc1")
    e(f"s_lshl_b32 s{S_XFO}, s{S_B}, 4")
    e(f"s_add_u32 s{S_XFO}, s{S_XFO}, s{S_P}")
    e(f"s_lshl_b32 s{S_XFO}, s{S_XFO}, 6")
    e(f"s_add_u32 s{S_XFO}, s{S_XFO}, {XF_BASE}")
    e(f"v_mov_b32 v{V_XF+1}, 0")
    e(f"buffer_load_dword v{V_XF}, v{V_XF+1}, {srd(S_WS)}, s{S_XFO} offen sc1")
    issue("FR", 4)
    if codewarm:
        e("s_getpc_b64 s[20:21]")
        g.lab("L_pc")
        e(f"s_sub_u32 s20, s20, L_pc-{NAME}_kernel")
        e("s_subb_u32 s21, s21, 0")
        e(f"s_lshr_b32 s{S_T3}, s2, 3")
        e(f"s_lshl_b32 s{S_T3}, s{S_T3}, 2")
        e(f"s_add_u32 s{S_T3}, s{S_T3}, s{S_W}")
        e(f"s_mul_i32 s{S_T3}, s{S_T3}, 384")
        e(f"s_min_u32 s{S_T3}, s{S_T3}, L_end-{NAME}_kernel-1024")
        e(f"v_add_u32 v{T+2}, s{S_T3}, v{V_L16}")
        e(f"global_load_dwordx4 v[252:255], v{T+2}, s[20:21]")
        issue("CW", 1)
    for i in range(4):
        e(f"v_add_u32 v{T+2}, {4*(i&1)}, v{T}")
        e(f"v_lshlrev_b32 v{T+2}, 1, v{T+2}")
        e(f"v_xor_b32 v{T+2}, v{T+2}, v{T+1}")
        e(f"v_lshlrev_b32 v{T+2}, 4, v{T+2}")
        e(f"v_lshl_add_u32 v{V_OFFW+i}, v{T}, 10, v{T+2}")
        if i:
            e(f"v_add_u32 v{V_OFFW+i}, {3072*i}, v{V_OFFW+i}")
    e(f"v_xor_b32 v{T+2}, v{T}, v{T+1}")
    e(f"s_lshl_b32 s{S_T3}, s{S_PW}, 3")
    e(f"v_xor_b32 v{T+2}, s{S_T3}, v{T+2}")
    e(f"v_lshlrev_b32 v{T+3}, 8, v{T+1}")
    e(f"v_add_u32 v{T+3}, s{S_KB}, v{T+3}")
    for s in range(4):
        e(f"v_xor_b32 v{T+4}, {4*s}, v{T+2}")
        e(f"v_lshl_add_u32 v{V_KRD+s}, v{T+4}, 4, v{T+3}")
    e(f"v_lshrrev_b32 v{T+2}, 2, v0")
    e(f"v_lshlrev_b32 v{T+3}, 8, v{T+2}")
    e(f"v_add_u32 v{T+3}, s{S_RING}, v{T+3}")
    e(f"v_bfe_u32 v{T+4}, v0, 1, 1")
    e(f"v_lshl_add_u32 v{T+3}, v{T+4}, 4, v{T+3}")
    e(f"v_and_b32 v{T+4}, 1, v0")
    e(f"v_lshl_add_u32 v{T+3}, v{T+4}, 3, v{T+3}")
    e(f"v_and_b32 v{T+2}, 7, v{T+2}")
    e(f"v_lshlrev_b32 v{T+2}, 1, v{T+2}")
    for t in range(8):
        e(f"v_xor_b32 v{T+4}, {2*t}, v{T+2}")
        e(f"v_lshl_add_u32 v{V_WRD+t}, v{T+4}, 4, v{T+3}")
    e(f"v_xor_b32 v{T+2}, s{S_T3}, v{T+2}")
    e(f"s_sub_u32 s{S_CNT}, s{S_VB}, s{S_RING}")
    e(f"v_add_u32 v{T+3}, s{S_CNT}, v{T+3}")
    for t in range(8):
        e(f"v_xor_b32 v{T+4}, {2*t}, v{T+2}")
        e(f"v_lshl_add_u32 v{V_VRD+t}, v{T+4}, 4, v{T+3}")
    e(f"v_lshrrev_b32 v{T+2}, 1, v{T+1}")
    e(f"v_xor_b32 v{T+2}, v{T+2}, v{T}")
    e(f"v_lshlrev_b32 v{T+3}, 7, v{T+1}")
    e(f"v_add_u32 v{T+3}, {MISC0}, v{T+3}")
    e(f"v_lshl_add_u32 v{XR}, v{T+2}, 4, v{T+3}")
    e(f"v_xor_b32 v{T+2}, 4, v{T+2}")
    e(f"v_lshl_add_u32 v{XR+1}, v{T+2}, 4, v{T+3}")
    e(f"v_bfe_u32 v{T+2}, v0, 2, 2")
    e(f"v_bfe_u32 v{T+3}, v0, 4, 1")
    e(f"v_lshl_add_u32 v{T+3}, v{T+3}, 3, v{T+2}")
    e(f"v_lshlrev_b32 v{T+3}, 9, v{T+3}")
    e(f"v_lshrrev_b32 v{T+4}, 5, v0")
    e(f"v_lshl_add_u32 v{T+3}, v{T+4}, 15, v{T+3}")
    e(f"v_and_b32 v{T+4}, 3, v0")
    e(f"s_lshl_b32 s{S_T3}, s{S_W}, 3")
    e(f"v_add_u32 v{T+4}, s{S_T3}, v{T+4}")
    e(f"v_lshlrev_b32 v{T+2}, 2, v{T+2}")
    e(f"v_xor_b32 v{T+4}, v{T+4}, v{T+2}")
    e(f"v_lshl_add_u32 v{WR}, v{T+4}, 4, v{T+3}")
    e(f"v_xor_b32 v{T+4}, 4, v{T+4}")
    e(f"v_lshl_add_u32 v{WR+1}, v{T+4}, 4, v{T+3}")
    e(f"v_add_u32 v{WR+2}, 0x10000, v{WR}")
    e(f"v_add_u32 v{WR+3}, 0x10000, v{WR+1}")
    for i in range(4):
        e(f"v_mov_b32 v{V_ONES+i}, 0x3f803f80")
    for i in range(20):
        e(f"v_mov_b32 v{V_NM+i}, 0")
    for i in range(32):
        e(f"v_mov_b32 v{V_VF+32+i}, 0")
    for i in range(8):
        e(f"v_mov_b32 v{V_P+i}, 0")
    for i in range(144, 180):
        e(f"v_accvgpr_write_b32 a{i}, 0")
    e(f"s_mov_b32 s{S_C2}, {f2u(SCALE_C):#x}")
    e(f"s_mov_b32 s{S_C2+1}, {f2u(SCALE_C):#x}")
    e(f"s_mov_b32 s{S_THRESH}, {NEG_INF:#x}")
    e(f"s_mov_b32 s{S_DMIN}, {NEG_INF:#x}")
    e(f"s_lshl_b32 s{S_WOB}, s{S_H0}, 17")
    e(f"s_lshl_b32 s{S_T3}, s{S_W}, 8")
    e(f"s_add_u32 s{S_WOB}, s{S_WOB}, s{S_T3}")

    def kslot(par):
        return 2 * (par ^ 1)

    def k_reads(par, slot=None):
        if slot is None:
            slot = kslot(par)
        out = []
        for kt in range(2):
            for s in range(4):
                d = A_KF + par * 32 + (kt * 4 + s) * 4
                out.append(f"ds_read_b128 {ar(d)}, v{V_KRD+s} offset:{slot*SLOT + kt*4096}")
        return out

    def v_reads(par, slot=None):
        if slot is None:
            slot = kslot(par) + 1
        out = []
        for t in range(8):
            for hf in range(2):
                d = V_VF + par * 32 + t * 4 + hf * 2
                out.append(f"ds_read_b64_tr_b16 v[{d}:{d+1}], v{V_VRD+t} offset:{slot*SLOT + hf*4096}")
        return out

    A_XF = 0
    A_WF = 80
    QACC = V_Q

    def qreads(n):
        out = []
        xb = (n % 3) * 10240
        xf = A_XF + (n & 1) * 40
        wf = A_WF + (n & 1) * 32
        for ks in range(2):
            for tp in range(4):
                sp, par = tp >> 1, tp & 1
                for hf in range(2):
                    off = wslot(n) * SLOT + hf * 2048 + 8 * par
                    d = wf + (ks * 4 + tp) * 4 + hf * 2
                    out.append(f"ds_read_b64_tr_b16 a[{d}:{d+1}], v{WR + ks*2 + sp} offset:{off}")
            for j in range(5):
                d = xf + (ks * 5 + j) * 4
                out.append(f"ds_read_b128 {ar(d)}, v{XR+ks} offset:{xb + j*2048}")
        return out

    def qmfma(n):
        out = []
        xf = A_XF + (n & 1) * 40
        wf = A_WF + (n & 1) * 32
        for ks in range(2):
            for j in range(5):
                for tp in range(4):
                    d = QACC + (tp * 5 + j) * 4
                    cc = "0" if (n == 0 and ks == 0) else vr(d)
                    out.append(f"v_mfma_f32_16x16x32_bf16 {vr(d)}, {ar(wf + (ks*4+tp)*4)}, {ar(xf + (ks*5+j)*4)}, {cc}")
        return out

    def refill(n):
        out = []
        if n == 2:
            out.append((by_role(dma_kv("V", 0, goff_imm=0), warm_loads(range(8))), "V0", 8))
        if n + 3 < 8:
            out.append((chunk(n + 3), f"C{n+3}", 11))
        if n == 5:
            out.append((by_role(dma_kv("K", 0, goff_imm=8192) + dma_kv("V", 1, goff_imm=8192),
                                dma_half("K", 1, goff_imm=8192) + dma_half("V", 1, goff_imm=8192) + dma_half("K", 0, goff_imm=2 * 8192) + warm_loads((4, 0, 1, 2), S_WOX)), "K1", 16))
        if n == 6:
            out.append((by_role(dma_kv("K", 2, goff_imm=2 * 8192), wo_chunk(0, S_RING, 2 * SLOT)), "K2", 8))
        return out

    wait_tag("C0")
    stamp("c0")
    e("s_barrier")
    for l in qreads(0):
        e(l)
    e("s_waitcnt lgkmcnt(0)")
    e("s_barrier")
    for r, tag, cnt in refill(0):
        for l in r:
            put(l)
        issue(tag, cnt)
    for n in range(8):
        M = qmfma(n)
        if n + 1 < 8:
            wait_tag(f"C{n+1}")
            R = qreads(n + 1)
            if n + 1 == 2:
                wait_tag("K0")
                R = R + k_reads(0, slot=0)
            if n + 1 == 5:
                wait_tag("V0")
                R = R + v_reads(0, slot=0)
            stamp(f"c{n+1}")
            e("s_barrier")
            interleave(M[:20], R)
            e("s_waitcnt lgkmcnt(0)")
            e("s_barrier")
            rr = refill(n + 1)
            plain = [l for x in rr if not x[0][0].startswith("s_cmp_eq") for l in x[0]]
            first = True
            for x in rr:
                if x[0][0].startswith("s_cmp_eq"):
                    for l in x[0]:
                        put(l)
            interleave(M[20:], plain)
            for _, tag, cnt in rr:
                issue(tag, cnt)
        else:
            Z = [f"v_accvgpr_write_b32 a{i}, 0" for i in list(range(0, 40)) + list(range(80, 112))]
            interleave(M, Z)
    stamp("qdone")
    for i in list(range(40, 80)) + list(range(112, 144)):
        e(f"v_accvgpr_write_b32 a{i}, 0")
    e(f"v_add_u32 v{T}, s{S_RING}, v{V_L16}")
    e(f"v_add_u32 v{T+1}, s{S_MISC}, v{V_L16}")
    e(f"v_add_u32 v{T+2}, s{S_PRING}, v{V_L16}")
    e(f"v_add_u32 v{T+3}, s{S_PMISC}, v{V_L16}")
    for sp in range(2):
        for j in range(5):
            qd = V_Q + (sp * 5 + j) * 4
            for par in range(2):
                a = QACC + ((2 * sp + par) * 5 + j) * 4
                e(f"v_pk_mul_f32 v[{a}:{a+1}], v[{a}:{a+1}], s[{S_C2}:{S_C2+1}]")
                e(f"v_pk_mul_f32 v[{a+2}:{a+3}], v[{a+2}:{a+3}], s[{S_C2}:{S_C2+1}]")
                e(f"v_cvt_pk_bf16_f32 v{qd+2*par}, v{a}, v{a+1}")
                e(f"v_cvt_pk_bf16_f32 v{qd+2*par+1}, v{a+2}, v{a+3}")
            f = sp * 5 + j
            if f < 8:
                e(f"ds_write_b128 v{T}, {vr(V_Q + f*4)} offset:{3*SLOT + f*1024}")
            else:
                e(f"ds_write_b128 v{T+1}, {vr(V_Q + f*4)} offset:{(f-8)*1024}")
    e("s_waitcnt lgkmcnt(0)")
    e("s_barrier")
    for f in range(10):
        if f < 8:
            e(f"ds_read_b128 {vr(V_Q + 40 + f*4)}, v{T+2} offset:{3*SLOT + f*1024}")
        else:
            e(f"ds_read_b128 {vr(V_Q + 40 + f*4)}, v{T+3} offset:{(f-8)*1024}")
    e("s_waitcnt lgkmcnt(0)")
    e("s_barrier")
    for l in wo_chunk(4, S_MISC, 0):
        e(l)
    if spread:
        xl = dma_kv("V", 3, goff_imm=2 * 8192)[0:3]
        if not ywarm:
            xl = warm_loads((0, 1, 2, 3, 5, 6, 7)) + xl
        yl = wo_chunk(1, S_RING, 3 * SLOT) + warm_loads((3, 5, 6, 7), S_WOX)
    else:
        xl = dma_kv("V", 3, goff_imm=2 * 8192) + warm_loads((0, 1, 2, 3, 5, 6, 7))
        yl = wo_chunk(1, S_RING, 3 * SLOT) + warm_loads((2, 3, 5, 6, 7, 5, 6))
    for l in by_role(xl, yl, eq=False):
        put(l)
    e(f"s_mov_b32 s{S_KOFF}, {3*8192}")
    e(f"s_add_u32 s{S_VOFF}, s{S_HOFF}, {2*8192}")
    e(f"s_mov_b32 s{S_CNT}, 0")

    def qk(par, j, sb):
        out = []
        for kt in range(2):
            d = V_S + sb * 8 + kt * 4
            for s in range(4):
                cc = vr(V_NM + j * 4) if s == 0 else vr(d)
                out.append(f"v_mfma_f32_16x16x32_bf16 {vr(d)}, {ar(A_KF + par*32 + (kt*4+s)*4)}, {vr(V_Q + (s*5+j)*4)}, {cc}")
        return out

    def pv(par, j, pb):
        out = []
        for t in range(8):
            d = A_O + (t * 5 + j) * 4
            out.append(f"v_mfma_f32_16x16x32_bf16 {ar(d)}, {vr(V_VF + par*32 + t*4)}, {vr(V_P + pb*4)}, {ar(d)}")
        d = A_L + j * 4
        out.append(f"v_mfma_f32_16x16x32_bf16 {ar(d)}, {vr(V_ONES)}, {vr(V_P + pb*4)}, {ar(d)}")
        return out

    stamp("loop")
    for l in qk(0, 0, 0):
        e(l)
    e(f"s_cmp_eq_u32 s{S_ISA}, 1")
    e("s_nop 5")
    e("s_cbranch_scc0 L_preX")
    e(f"s_add_u32 s{S_KOFF}, s{S_KOFF}, s{S_HOFF}")
    e("s_branch L_loopY")

    SPREAD = [(0, 5, "V", 1), (0, 8, "V", 2), (0, 11, "V", 3), (0, 15, "V", 4),
              (1, 6, "V", 5), (1, 10, "V", 6), (1, 14, "V", 7),
              (2, 5, "K", 0), (2, 9, "K", 1), (2, 15, "K", 2),
              (3, 5, "K", 3), (3, 10, "K", 4), (3, 15, "K", 5),
              (4, 5, "K", 6), (4, 9, "K", 7), (4, 15, "V", 0)]
    seq = []
    marks = {}
    for it in range(6):
        for stp in range(5):
            if stp == 1:
                marks[("K", it)] = len(seq)
            if stp == 3:
                marks[("V", it)] = len(seq)
            for (st_, pos, which, idx) in sorted([x for x in SPREAD if x[0] == stp], key=lambda x: x[1]):
                tile = it + 3 if (which == "K" or st_ == 4) else it + 2
                seq.append((which, tile))
    it = 4
    lastK = max(i for i, x in enumerate(seq) if x == ("K", it + 1))
    lastV = max(i for i, x in enumerate(seq) if x == ("V", it + 1))
    NK = marks[("K", it)] - 1 - lastK
    NV = marks[("V", it)] - 1 - lastV
    print("spread waits", NK, NV)

    def main_loop(R, nt):
        slow_blocks = []

        def sm(j, sb, uid):
            s = V_S + sb * 8
            p = V_P + sb * 4
            t0, t1 = V_T, V_T + 1
            ex = [f"v_exp_f32 v{s+i}, v{s+i}" for i in range(8)]
            cv = [f"v_cvt_pk_bf16_f32 v{p+i}, v{s+2*i}, v{s+2*i+1}" for i in range(4)]
            G = [[f"v_max3_f32 v{t0}, v{s}, v{s+1}, v{s+2}", f"v_max3_f32 v{t1}, v{s+3}, v{s+4}, v{s+5}"],
                 [f"v_max3_f32 v{t0}, v{t0}, v{s+6}, v{s+7}", f"v_max_f32 v{t0}, v{t0}, v{t1}"],
                 [f"v_cmp_lt_f32 vcc, s{S_THRESH}, v{t0}", f"s_cbranch_vccnz L_slow{R}{uid}", f"L_ret{R}{uid}:"],
                 [ex[0]], [ex[1]], [], [ex[2]], [ex[3]], [cv[0]], [ex[4]], [ex[5]], [cv[1]], [ex[6]], [ex[7]], [cv[2]], [], [cv[3]]]
            slow_blocks.append((uid, j, sb))
            return G

        g.lab(f"L_loop{R}")
        hooks = []
        for par in range(2):
            for j in range(5):
                u = par * 5 + j
                sb = u & 1
                mq = qk(par, j + 1, sb ^ 1) if j < 4 else qk(par ^ 1, 0, sb ^ 1)
                mp = pv(par, j - 1, sb ^ 1) if j > 0 else pv(par ^ 1, 4, sb ^ 1)
                M = mq + mp
                G = sm(j, sb, u)
                extra = [[] for _ in range(17)]

                def place_dma(d):
                    extra[5] += d[0:3]
                    extra[8] += [d[3]]
                    extra[9] += [d[4]]
                    extra[11] += [d[5]]
                    extra[12] += d[6:8]
                    extra[13] += [d[8]]
                    extra[14] += [d[9]]
                    extra[15] += [d[10]]
                    extra[16] += [d[11]]

                def hook(c, slot, cnt):
                    nm = f"L_hk{R}{c}"
                    extra[3] += [f"s_cmp_eq_u32 s{S_CNT}, {cnt}", f"s_cbranch_scc1 {nm}", f"{nm}_ret:"]
                    hooks.append((nm, c, slot))

                if par == 1 and j == 0:
                    extra[0] += [f"s_mov_b32 s{S_THRESH}, {f2u(THR_T):#x}", f"s_mov_b32 s{S_DMIN}, 0"]
                if R == "X" and not spread:
                    if j == 1:
                        extra[0] = ["s_waitcnt vmcnt(24)"]
                        r = k_reads(par ^ 1)
                        for i, pos in enumerate((5, 5, 8, 8, 11, 11, 15, 15)):
                            extra[pos].append(r[i])
                    if j == 2:
                        extra[0] = ["s_waitcnt lgkmcnt(0)"]
                        if par == 1:
                            hook(0, 2, 6)
                        else:
                            hook(2, 0, 7)
                        place_dma(dma_kv("K", kslot(par ^ 1), nt=nt))
                    if j == 3:
                        extra[0] = ["s_waitcnt vmcnt(24)"]
                        r = v_reads(par ^ 1)
                        for i in range(16):
                            extra[1 + i].append(r[i])
                    if j == 4:
                        extra[0] = ["s_waitcnt lgkmcnt(0)"]
                        if par == 1:
                            hook(1, 3, 6)
                        else:
                            hook(3, 1, 7)
                        place_dma(dma_kv("V", kslot(par ^ 1) + 1, nt=nt))
                        extra[16] += [f"s_add_u32 s{S_KOFF}, s{S_KOFF}, 8192"]
                elif R == "X":
                    for (st_, pos, which, idx) in SPREAD:
                        if st_ != j:
                            continue
                        if which == "K":
                            slot = kslot(par ^ 1)
                            so = S_KOFF
                        else:
                            late = (st_ < 4)
                            slot = (kslot(par) + 1) if late else (kslot(par ^ 1) + 1)
                            so = S_VOFF
                        half, i = idx >> 2, idx & 3
                        s_ = S_K if which == "K" else S_V
                        vo = V_OFFK + i if which == "K" else V_OFFV + (i & 1)
                        pre = [f"s_add_u32 m0, s{S_DRING}, {slot*SLOT + half*4096}"]
                        if half:
                            pre.append(f"s_add_u32 s{S_T3}, s{so}, 4096")
                            sreg = S_T3
                        else:
                            sreg = so
                        extra[pos - 1] += pre
                        extra[pos] += [f"buffer_load_dwordx4 v{vo}, {srd(s_)}, s{sreg} offen offset:{i*1024} {nt} lds"]
                        if which == "K" and idx == 7:
                            extra[pos] += [f"s_add_u32 s{S_KOFF}, s{S_KOFF}, 8192"]
                        if which == "V" and idx == 7:
                            extra[pos] += [f"s_add_u32 s{S_VOFF}, s{S_VOFF}, 8192"]
                    if j == 1:
                        extra[0] = [f"s_waitcnt vmcnt({NK})"] + extra[0]
                        r = k_reads(par ^ 1)
                        for i, pos in enumerate((5, 5, 8, 8, 11, 11, 15, 15)):
                            extra[pos].append(r[i])
                    if j == 2:
                        extra[0] = ["s_waitcnt lgkmcnt(0)"] + extra[0]
                        if par == 1:
                            hook(0, 2, 6)
                        else:
                            hook(2, 0, 7)
                    if j == 3:
                        extra[0] = [f"s_waitcnt vmcnt({NV})"] + extra[0]
                        r = v_reads(par ^ 1)
                        for i in range(16):
                            extra[1 + i].append(r[i])
                    if j == 4:
                        extra[0] = ["s_waitcnt lgkmcnt(0)"] + extra[0]
                        if par == 1:
                            hook(1, 3, 6)
                        else:
                            hook(3, 1, 7)
                else:
                    if j == 1:
                        extra[0] = [f"s_waitcnt vmcnt({8 + 4*pf})", "s_barrier"]
                        r = k_reads(par ^ 1, slot=par ^ 1)
                        for i, pos in enumerate((1, 1, 5, 5, 8, 8, 11, 11)):
                            extra[pos].append(r[i])
                        if par == 1:
                            extra[3] += [f"s_cmp_eq_u32 s{S_CNT}, 7", "s_cbranch_scc1 L_hkYW", "L_hkYW_ret:"]
                        d = dma_half("V", par, nt=nt)
                        extra[12] += d[0:3]
                        extra[14] += [d[3]]
                        extra[15] += [d[4]]
                        extra[16] += [d[5], f"s_add_u32 s{S_VOFF}, s{S_VOFF}, 8192"]
                    if j == 2:
                        extra[12] += ["s_waitcnt lgkmcnt(0)"]
                    if j == 3:
                        extra[0] = [f"s_waitcnt vmcnt({8 + 2*pf})", "s_barrier"]
                        r = v_reads(par ^ 1, slot=par ^ 1)
                        for i in range(16):
                            extra[1 + i].append(r[i])
                    if j == 4:
                        if par == 1:
                            extra[1] += [f"s_cmp_eq_u32 s{S_CNT}, 6", "s_cbranch_scc1 L_hkYD", "L_hkYD_ret:"]
                        d = dma_half("K", par ^ 1, nt=nt)
                        extra[3] += d[0:3]
                        extra[5] += [d[3]]
                        extra[6] += [d[4]]
                        extra[8] += [d[5], f"s_add_u32 s{S_KOFF}, s{S_KOFF}, 8192"]
                        if pf:
                            h = helper(pf)
                            for i, l in enumerate(h):
                                extra[min(16, 9 + i)].append(l)
                        extra[16] += ["s_waitcnt lgkmcnt(0)"]
                g.c(f"---- {R} step par={par} j={j}")
                for i in range(17):
                    if i == 0:
                        for x in extra[0]:
                            put(x)
                    e(M[i])
                    for x in G[i]:
                        put(x)
                    if i > 0:
                        for x in extra[i]:
                            put(x)
        e(f"s_add_u32 s{S_CNT}, s{S_CNT}, 1")
        e(f"s_cmp_lt_u32 s{S_CNT}, 8")
        e(f"s_cbranch_scc1 L_loop{R}")
        if R == "X" and defer:
            e(f"s_cmp_lg_u32 s{S_W}, 0")
            e("s_cbranch_scc1 L_epi")
            e(f"v_add_u32 v{V_XF}, 1, v{V_XF}")
            e("s_mov_b64 exec, 1")
            e(f"buffer_store_dword v{V_XF}, v{V_XF+1}, {srd(S_WS)}, s{S_XFO} offen sc1")
            e("s_mov_b64 exec, -1")
        if R == "Y":
            e(f"s_waitcnt vmcnt({8 + 2*pf})")
        e("s_branch L_epi")
        if R == "Y":
            g.lab("L_hkYD")
            e(f"s_mov_b32 s{S_K+2}, 0")
            e(f"s_mov_b32 s{S_V+2}, 0")
            e(f"s_mov_b32 s{S_KDST}, 0x30000")
            e(f"s_mov_b32 s{S_VDST}, 0x30000")
            e("s_branch L_hkYD_ret")
            g.lab("L_hkYW")
            for l in wo_chunk(2, S_RING, 0) + wo_chunk(3, S_RING, SLOT):
                e(l)
            e("s_branch L_hkYW_ret")
        for nm, c, slot in hooks:
            g.lab(nm)
            if c == 0:
                e(f"s_mov_b32 s{S_K+2}, 0")
                e(f"s_mov_b32 s{S_V+2}, 0")
                e(f"s_mov_b32 s{S_DRING}, 0x30000")
            for l in wo_chunk(c, S_RING, slot * SLOT):
                e(l)
            e(f"s_branch {nm}_ret")
        for uid, j, sb in slow_blocks:
            t0, t1, t2, t3 = V_T, V_T + 1, V_T + 2, V_T + 3
            s = V_S + sb * 8
            g.lab(f"L_slow{R}{uid}")
            e(f"v_mov_b32 v{t1}, v{t0}")
            e("s_nop 1")
            e(f"v_permlane32_swap_b32 v{t0}, v{t1}")
            e(f"v_max_f32 v{t0}, v{t0}, v{t1}")
            e(f"v_mov_b32 v{t1}, v{t0}")
            e("s_nop 1")
            e(f"v_permlane16_swap_b32 v{t0}, v{t1}")
            e(f"v_max_f32 v{t0}, v{t0}, v{t1}")
            e(f"v_max_f32 v{t0}, s{S_DMIN}, v{t0}")
            e(f"v_max_f32 v{t2}, 0, v{t0}")
            e(f"v_exp_f32 v{t2}, -v{t2}")
            e(f"v_sub_f32 v{V_NM+4*j}, v{V_NM+4*j}, v{t0}")
            for i in range(8):
                e(f"v_sub_f32 v{s+i}, v{s+i}, v{t0}")
            for i in range(1, 4):
                e(f"v_mov_b32 v{V_NM+4*j+i}, v{V_NM+4*j}")
            regs = [A_O + (t * 5 + j) * 4 + r for t in range(8) for r in range(4)] + [A_L + j * 4 + r for r in range(4)]
            for k in range(0, 36, 2):
                e(f"v_accvgpr_read_b32 v{t1}, a{regs[k]}")
                e(f"v_accvgpr_read_b32 v{t3}, a{regs[k+1]}")
                e(f"v_mul_f32 v{t1}, v{t1}, v{t2}")
                e(f"v_mul_f32 v{t3}, v{t3}, v{t2}")
                e(f"v_accvgpr_write_b32 a{regs[k]}, v{t1}")
                e(f"v_accvgpr_write_b32 a{regs[k+1]}, v{t3}")
            e("s_nop 1")
            e(f"s_branch L_ret{R}{uid}")

    g.lab("L_preX")
    e(f"s_mov_b32 s{S_VOFF}, {2*8192}")
    main_loop("X", nt_x)
    main_loop("Y", nt_y)

    g.lab("L_epi")
    q.clear()
    done[0] = -1
    for c in range(4):
        issue(f"W{c}", 8)
    WFA, WFB = A_KF, A_KF + 32
    WFC = [160 + 4 * k for k in range(5)] + [244 + 4 * k for k in range(3)]
    FA = [WFA + 4 * k for k in range(8)]
    FB = [WFB + 4 * k for k in range(8)]

    def w_reads(off, dst, tiles=range(8), abase=V_WRD):
        out = []
        for k, t in enumerate(tiles):
            for hf in range(2):
                d = dst[k] + hf * 2
                out.append(f"ds_read_b64_tr_b16 a[{d}:{d+1}], v{abase+t} offset:{off + hf*4096}")
        return out

    EA, EP, EM, EMP, EH = 1, 2, 3, 4, 5
    W4A = 8
    X0 = [wait_str("W1")] + w_reads(2 * SLOT, FA) + w_reads(3 * SLOT, FB)
    X0 += [f"v_add_u32 v{EA}, s{S_RING}, v{V_L16}", f"v_add_u32 v{EP}, s{S_PRING}, v{V_L16}",
           f"v_lshlrev_b32 v{EH}, 2, v0", f"v_add_u32 v{EM}, s{S_RING}, v{EH}", f"v_add_u32 v{EMP}, s{S_PRING}, v{EH}",
           f"v_add_u32 v{EH}, 0x10000, v{V_L16}", f"s_sub_u32 s{S_T3}, s{S_MISC}, s{S_RING}"]
    X0 += [f"v_add_u32 v{W4A+t}, s{S_T3}, v{V_WRD+t}" for t in range(8)]
    e("s_nop 1")
    interleave(pv(1, 4, 1), X0)
    stamp("attn")
    VL = V_S
    e("s_nop 3")
    for j in range(5):
        e(f"v_accvgpr_read_b32 v{VL+j}, a{A_L + j*4}")
    wait_tag("W2")
    for l in w_reads(0, WFC):
        e(l)
    e("s_waitcnt lgkmcnt(0)")
    for f in range(20):
        off = 2 * SLOT + f * 1024 if f < 16 else (f - 16) * 1024
        e(f"ds_write_b128 v{EA}, {ar(A_O + 80 + f*4)} offset:{off}")
    for j in range(5):
        e(f"ds_write_b32 v{EM}, v{V_NM+4*j} offset:{4096 + j*256}")
        e(f"ds_write_b32 v{EM}, v{VL+j} offset:{4096 + (5+j)*256}")
    e("s_waitcnt lgkmcnt(0)")
    e("s_barrier")
    stamp("b1")
    RX = V_Q
    for j in range(5):
        e(f"ds_read_b32 v{VL+5+j}, v{EMP} offset:{4096 + j*256}")
        e(f"ds_read_b32 v{VL+10+j}, v{EMP} offset:{4096 + (5+j)*256}")
    for f in range(20):
        off = 2 * SLOT + f * 1024 if f < 16 else (f - 16) * 1024
        e(f"ds_read_b128 {vr(RX + f*4)}, v{EP} offset:{off}")
    OWN = V_VF
    for i in range(64):
        e(f"v_accvgpr_read_b32 v{OWN+i}, a{A_O+i}")
    e("s_waitcnt lgkmcnt(15)")
    SC = V_T
    ta, tb, tc = V_P, V_P + 1, V_P + 2
    for j in range(5):
        e(f"v_min_f32 v{ta}, v{V_NM+4*j}, v{VL+5+j}")
        e(f"v_sub_f32 v{tb}, v{ta}, v{V_NM+4*j}")
        e(f"v_sub_f32 v{tc}, v{ta}, v{VL+5+j}")
        e(f"v_exp_f32 v{tb}, v{tb}")
        e(f"v_exp_f32 v{tc}, v{tc}")
        e("s_nop 0")
        e(f"v_mul_f32 v{ta}, v{tb}, v{VL+j}")
        e(f"v_fma_f32 v{ta}, v{tc}, v{VL+10+j}, v{ta}")
        e(f"v_rcp_f32 v{ta}, v{ta}")
        e("s_nop 0")
        e(f"v_mul_f32 v{SC+2*j}, v{tb}, v{ta}")
        e(f"v_mul_f32 v{SC+2*j+1}, v{tc}, v{ta}")
    OWN2 = V_NM
    for i in range(16):
        e(f"v_accvgpr_read_b32 v{OWN2+i}, a{A_O+64+i}")
    e("s_waitcnt lgkmcnt(0)")
    for sp in range(2):
        for j in range(5):
            od = RX + (sp * 5 + j) * 4
            for par in range(2):
                f = (2 * sp + par) * 5 + j
                r = RX + f * 4
                o = OWN + f * 4 if f < 16 else OWN2 + (f - 16) * 4
                sc = f"v[{SC+2*j}:{SC+2*j+1}]"
                e(f"v_pk_mul_f32 v[{r}:{r+1}], v[{r}:{r+1}], {sc} op_sel:[0,1] op_sel_hi:[1,1]")
                e(f"v_pk_mul_f32 v[{r+2}:{r+3}], v[{r+2}:{r+3}], {sc} op_sel:[0,1] op_sel_hi:[1,1]")
                e(f"v_pk_fma_f32 v[{r}:{r+1}], v[{o}:{o+1}], {sc}, v[{r}:{r+1}] op_sel_hi:[1,0,1]")
                e(f"v_pk_fma_f32 v[{r+2}:{r+3}], v[{o+2}:{o+3}], {sc}, v[{r+2}:{r+3}] op_sel_hi:[1,0,1]")
                e(f"v_cvt_pk_bf16_f32 v{od+2*par}, v{r}, v{r+1}")
                e(f"v_cvt_pk_bf16_f32 v{od+2*par+1}, v{r+2}, v{r+3}")
            e(f"ds_write_b128 v{EP}, {vr(od)} offset:{2*SLOT + (sp*5+j)*1024}")
    e("s_waitcnt lgkmcnt(0)")
    e("s_barrier")
    stamp("b2")
    A_OF = 0
    for wp in range(4):
        rg = wp ^ 1
        va = V_L16 if rg < 2 else EH
        for f in range(10):
            e(f"ds_read_b128 {ar(A_OF + (wp*10+f)*4)}, v{va} offset:{(rg & 1)*RING + 2*SLOT + f*1024}")
    S_PB = S_T2
    e(f"s_xor_b32 s{S_PB}, s{S_ISA}, 1")
    e(f"s_lshl_b32 s{S_PB}, s{S_PB}, 3")
    e(f"s_add_u32 s{S_PB}, s{S_PB}, s{S_B}")
    e(f"s_lshl_b32 s{S_PB}, s{S_PB}, 4")
    e(f"s_add_u32 s{S_PB}, s{S_PB}, s{S_P}")
    e(f"s_mul_i32 s{S_PB}, s{S_PB}, {PART}")
    e(f"s_mul_i32 s{S_T3}, s{S_W}, 20480")
    e(f"s_add_u32 s{S_PB}, s{S_PB}, s{S_T3}")
    e(f"v_add_u32 v{V_F0}, 1, v{V_F0}")
    if not early:
        e("s_waitcnt lgkmcnt(0)")
        e("s_barrier")
    stamp("comb")
    YACC = 40
    PK = 200

    def ymfma(c, wf, tiles=range(8), first=False):
        out = []
        for k, t in enumerate(tiles):
            for j in range(5):
                d = YACC + (t * 5 + j) * 4
                cc = "0" if first else vr(d)
                out.append(f"v_mfma_f32_16x16x32_bf16 {vr(d)}, {ar(wf[k])}, {ar(A_OF + (c*5+j)*4)}, {cc}")
        return out

    if early:
        M0_ = ymfma(0, FA, first=True)
        e("s_waitcnt lgkmcnt(15)")
        for l in M0_[:12]:
            e(l)
        e("s_waitcnt lgkmcnt(0)")
        e("s_barrier")
        interleave(M0_[12:], wo_chunk(5, S_RING, 2 * SLOT) + wo_chunk(6, S_RING, 3 * SLOT) + wo_chunk(7, S_RING, 0))
    else:
        interleave(ymfma(0, FA, first=True), wo_chunk(5, S_RING, 2 * SLOT) + wo_chunk(6, S_RING, 3 * SLOT) + wo_chunk(7, S_RING, 0))
    issue("W5", 8)
    issue("W6", 8)
    issue("W7", 8)
    wait_tag("W3")
    interleave(ymfma(1, FB), w_reads(1 * SLOT, FA), end=24)
    def u_reads(u, dst):
        out = []
        tl = (2 * u, 2 * u + 1)
        out += w_reads(0, dst[0:2], tiles=tl, abase=W4A)
        out += w_reads(2 * SLOT, dst[2:4], tiles=tl)
        out += w_reads(3 * SLOT, dst[4:6], tiles=tl)
        out += w_reads(0, dst[6:8], tiles=tl)
        return out

    def u_mfma(u, src):
        out = []
        for cc in range(4):
            out += ymfma(4 + cc, src[2 * cc:2 * cc + 2], tiles=(2 * u, 2 * u + 1))
        return out

    def u_store(u):
        out = []
        for j in range(5):
            pk = PK + (j & 1) * 4
            for par in range(2):
                a = YACC + ((2 * u + par) * 5 + j) * 4
                out.append(f"v_cvt_pk_bf16_f32 v{pk+2*par}, v{a}, v{a+1}")
                out.append(f"v_cvt_pk_bf16_f32 v{pk+2*par+1}, v{a+2}, v{a+3}")
            out.append(f"s_add_u32 s{S_T3}, s{S_PB}, {(u*5+j)*1024}")
            out.append(f"buffer_store_dwordx4 {vr(pk)}, v{V_L16}, {srd(S_WS)}, s{S_T3} offen sc1")
        return out

    def flag(u):
        return [f"s_mov_b64 exec, {1 << u}",
                f"buffer_store_dword v{V_F0}, v{V_FOFF}, {srd(S_WS)}, s{S_FLG} offen sc1",
                "s_mov_b64 exec, -1"]

    for l in ymfma(2, WFC):
        e(l)
    e("s_waitcnt lgkmcnt(0)")
    w7 = wait_str("W7")
    stamp("y2")
    interleave(ymfma(3, FA), [w7] + u_reads(0, FB), start=20)
    stamp("y3")
    if defer:
        e(f"s_cmp_eq_u32 s{S_ISA}, 0")
        e("s_cbranch_scc1 L_dfr_done")
        e(f"s_mov_b32 s{S_CNT}, 0")
        g.lab("L_dfr")
        e(f"buffer_load_dword v{V_T}, v{V_XF+1}, {srd(S_WS)}, s{S_XFO} offen sc1")
        e("s_waitcnt vmcnt(0)")
        e(f"v_cmp_ne_u32 vcc, v{V_XF}, v{V_T}")
        e("s_cbranch_vccnz L_dfr_done")
        e("s_sleep 2")
        e(f"s_add_u32 s{S_CNT}, s{S_CNT}, 1")
        e(f"s_cmp_lt_u32 s{S_CNT}, {defer_max}")
        e("s_cbranch_scc1 L_dfr")
        g.lab("L_dfr_done")
    for u in range(4):
        src = FB if u % 2 == 0 else WFC
        nxt = WFC if u % 2 == 0 else FB
        e("s_waitcnt lgkmcnt(0)")
        X = []
        if u + 1 < 4:
            X += u_reads(u + 1, nxt)
        if u >= 1:
            X = X[:6] + u_store(u - 1) + X[6:]
        interleave(u_mfma(u, src), X, start=3, end=36)
        if u >= 1:
            issue(f"S{u-1}", 5)
        if u >= 2:
            wait_tag(f"S{u-2}")
            for l in flag(u - 2):
                e(l)
            issue(f"F{u-2}", 1)
    stamp("yu")
    e("s_nop 7")
    for l in u_store(3):
        e(l)
    issue("S3", 5)
    wait_tag("S2")
    for l in flag(2):
        e(l)
    issue("F2", 1)
    wait_tag("S3")
    for l in flag(3):
        e(l)
    issue("F3", 1)
    stamp("prod")
    e("s_barrier")
    e(f"s_cmp_lg_u32 s{S_W}, 0")
    e("s_cbranch_scc1 L_nomark")
    e(f"v_mov_b32 v{T+1}, 1")
    e(f"v_mov_b32 v{T+2}, s2")
    e("s_mov_b64 exec, 1")
    e(f"buffer_store_byte v{T+1}, v{T+2}, {srd(S_DBG)}, 0 offen sc1")
    e("s_mov_b64 exec, -1")
    g.lab("L_nomark")
    e(f"s_cmp_eq_u32 s{S_ISA}, 0")
    e("s_cbranch_scc1 L_fin")
    e(f"v_lshrrev_b32 v{T+9}, 2, v{V_POFF}")
    e(f"v_and_b32 v{T+10}, 1, v{T+9}")
    e(f"v_lshrrev_b32 v{T+9}, 1, v{T+9}")
    e(f"v_lshl_add_u32 v{T+9}, v{T+10}, 4, v{T+9}")
    e(f"s_lshl_b32 s{S_T3}, s{S_B}, 5")
    e(f"v_add_u32 v{T+9}, s{S_T3}, v{T+9}")
    S_BR = S_CNT
    e(f"s_mov_b32 s{S_BR}, 0")
    e("s_mov_b32 s4, 0x00003f80")
    e("s_mov_b32 s5, 0x3f800000")
    e(f"v_and_b32 v{T+5}, 15, v0")
    e(f"v_lshrrev_b32 v{T+6}, 4, v0")
    e(f"v_lshlrev_b32 v{T+6}, 3, v{T+6}")
    e(f"v_lshl_add_u32 v{T+5}, v{T+5}, 11, v{T+6}")
    e(f"s_mul_i32 s6, s{S_B}, 163840")
    e(f"s_lshl_b32 s{S_T3}, s{S_P}, 6")
    e(f"s_add_u32 s6, s6, s{S_T3}")
    e(f"s_mul_i32 s7, s{S_W}, 10240")
    e(f"v_add_u32 v{T+7}, s7, v{V_L16}")
    e(f"s_lshl_b32 s7, s{S_W}, 11")
    e(f"v_add_u32 v{T+8}, s7, v{V_L16}")
    g.lab("L_cons")
    e(f"s_lshl_b32 s8, s{S_BR}, 3")
    e(f"s_add_u32 s8, s8, s{S_B}")
    e("s_lshl_b32 s8, s8, 4")
    e(f"s_add_u32 s9, s8, s{S_P}")
    e("s_lshl_b32 s9, s9, 6")
    e(f"s_add_u32 s9, s9, {FLAG_BASE}")
    e(f"s_lshl_b32 s10, s{S_W}, 2")
    e("s_add_u32 s10, s10, s8")
    e(f"s_mul_i32 s10, s10, {PART}")
    e(f"s_mul_i32 s11, s{S_P}, 5120")
    e("s_add_u32 s10, s10, s11")
    e(f"s_xor_b32 s13, s{S_BR}, 1")
    e("s_lshl_b32 s13, s13, 3")
    e("s_mov_b32 s14, 0")
    LD, AC = 80, 40
    for i in range(40):
        e(f"v_mov_b32 v{AC+i}, 0")
    g.lab("L_poll")
    e(f"buffer_load_dword v{T+3}, v{V_POFF}, {srd(S_WS)}, s9 offen sc1")
    e("s_waitcnt vmcnt(0)")
    e(f"v_cmp_eq_u32 vcc, v{V_C0}, v{T+3}")
    e("s_cbranch_vccz L_go")
    if poll_sleep:
        e(f"s_sleep {poll_sleep}")
    e("s_add_u32 s14, s14, 1")
    e("s_and_b32 s15, s14, 31")
    e("s_cbranch_scc1 L_poll")
    e(f"buffer_load_ubyte v{T+3}, v{T+9}, {srd(S_DBG)}, s13 offen sc1")
    e("s_waitcnt vmcnt(0)")
    e(f"v_cmp_eq_u32 vcc, 0, v{T+3}")
    e("s_cbranch_vccnz L_poll")
    g.lab("L_go")
    stamp("poll")
    for y in range(4):
        e(f"s_add_u32 s11, s10, {y*PART}")
        for j in range(5):
            if j < 4:
                e(f"buffer_load_dwordx4 {vr(LD + (y*5+j)*4)}, v{V_L16}, {srd(S_WS)}, s11 offen offset:{j*1024} sc1")
            else:
                e(f"s_add_u32 s11, s11, 4096")
                e(f"buffer_load_dwordx4 {vr(LD + (y*5+j)*4)}, v{V_L16}, {srd(S_WS)}, s11 offen sc1")
    for y in range(4):
        e(f"s_waitcnt vmcnt({15 - 5*y})")
        for j in range(5):
            for r in range(4):
                x = LD + (y * 5 + j) * 4 + r
                e(f"v_dot2c_f32_bf16 v{AC + j*8 + 2*r}, s4, v{x}")
                e(f"v_dot2c_f32_bf16 v{AC + j*8 + 2*r + 1}, s5, v{x}")
    e("s_nop 2")
    for j in range(5):
        for h2 in range(2):
            e(f"ds_write_b128 v{T+7}, {vr(AC + j*8 + h2*4)} offset:{(j*2+h2)*1024}")
    e(f"s_lshl_b32 s11, s{S_BR}, 10")
    e("s_add_u32 s11, s11, s6")
    e(f"s_lshl_b32 s12, s{S_W}, 15")
    e("s_add_u32 s12, s12, s11")
    e("s_waitcnt lgkmcnt(0)")
    e("s_barrier")

    def final_block(va, extra_off, soff):
        k = 0
        for w in range(4):
            for h2 in range(2):
                e(f"ds_read_b128 {vr(LD + k*4)}, v{va} offset:{w*10240 + h2*1024 + extra_off}")
                k += 1
        e("s_waitcnt lgkmcnt(0)")
        for i in range(8):
            h2, r = i >> 2, i & 3
            srcs = [LD + (kk * 2 + h2) * 4 + r for kk in range(4)]
            e(f"v_add_f32 v{AC+i}, v{srcs[0]}, v{srcs[1]}")
            e(f"v_add_f32 v{AC+8+i}, v{srcs[2]}, v{srcs[3]}")
        for i in range(8):
            e(f"v_add_f32 v{AC+i}, v{AC+i}, v{AC+8+i}")
        for i in range(4):
            e(f"v_cvt_pk_bf16_f32 v{AC+16+i}, v{AC+2*i}, v{AC+2*i+1}")
        e(f"buffer_store_dwordx2 v[{AC+16}:{AC+17}], v{T+5}, {srd(S_OUT)}, {soff} offen {out_pol}")
        e(f"buffer_store_dwordx2 v[{AC+18}:{AC+19}], v{T+5}, {srd(S_OUT)}, {soff} offen offset:32 {out_pol}")

    final_block(T + 8, 0, "s12")
    e(f"s_cmp_lg_u32 s{S_W}, 0")
    e("s_cbranch_scc1 L_skip4")
    e(f"s_add_u32 s12, s11, {4*32768}")
    final_block(T + 8, 4 * 2048, "s12")
    g.lab("L_skip4")
    e("s_barrier")
    e(f"v_mov_b32 v{V_C0}, v{V_C0+1}")
    e(f"s_add_u32 s{S_BR}, s{S_BR}, 1")
    e(f"s_cmp_lt_u32 s{S_BR}, 2")
    e("s_cbranch_scc1 L_cons")
    g.lab("L_fin")
    if stamps:
        e("s_waitcnt vmcnt(0)")
        stamp("end")
        n = len(stamps)
        e(f"s_lshl_b32 s{S_T1}, s2, 2")
        e(f"s_add_u32 s{S_T1}, s{S_T1}, s{S_W}")
        e(f"s_mul_i32 s{S_T1}, s{S_T1}, {n*8}")
        e(f"s_add_u32 s{S_T1}, s{S_T1}, {WS_BYTES - 256*4*n*8}")
        e("s_waitcnt lgkmcnt(0)")
        e("v_mov_b32 v8, 0")
        e("s_mov_b64 exec, 1")
        for k in range(n):
            e(f"v_mov_b32 v4, s{S_STAMP+2*k}")
            e(f"v_mov_b32 v5, s{S_STAMP+2*k+1}")
            e(f"buffer_store_dwordx2 v[4:5], v8, {srd(S_WS)}, s{S_T1} offen offset:{k*8}")
            e("s_nop 1")
    g.lab("L_end")
    e("s_endpgm")
    g.raw('.section .rodata,"a"')
    g.raw(".p2align 6")
    g.raw(f".amdhsa_kernel {NAME}_kernel")
    g.raw("  .amdhsa_next_free_vgpr 512")
    g.raw("  .amdhsa_next_free_sgpr 102")
    g.raw("  .amdhsa_accum_offset 256")
    g.raw("  .amdhsa_group_segment_fixed_size 0")
    g.raw("  .amdhsa_kernarg_size 104")
    g.raw("  .amdhsa_user_sgpr_count 2")
    g.raw("  .amdhsa_user_sgpr_kernarg_segment_ptr 1")
    g.raw("  .amdhsa_system_sgpr_workgroup_id_x 1")
    g.raw("  .amdhsa_float_denorm_mode_32 3")
    g.raw(".end_amdhsa_kernel")
    return g.text()


STAMPS = ["start", "c0", "qdone", "loop", "attn", "comb", "prod", "end"]
if __name__ == "__main__":
    t = gen()
    check(t)
    open("v5.s", "w").write(t)
    open("v5_st.s", "w").write(gen(stamps=STAMPS))
    open("v5_xw_st.s", "w").write(gen(stamps=STAMPS, ywarm=False))
```
